```python
import torch

def _softmax(x, axis=-1):
    return torch.softmax(x, dim=axis)
def _gelu(x):
    return torch.nn.functional.gelu(x, approximate="tanh")
def _silu(x):
    return torch.nn.functional.silu(x)
def _sigmoid(x):
    return torch.sigmoid(x)
def _layernorm(x, axis=-1, eps=1e-5):
    m = x.mean(dim=axis, keepdim=True)
    v = x.var(dim=axis, keepdim=True, unbiased=False)
    return (x - m) / torch.sqrt(v + eps)
def _scatter_add(tgt, idx, src, axis=0):
    return tgt.clone().index_add_(axis, idx, src)
def _segment_sum(src, seg, n):
    out = torch.zeros((n,) + src.shape[1:], dtype=src.dtype)
    return out.index_add_(0, seg, src)
def _pad(x, pw):
    flat = tuple(v for pair in reversed(pw) for v in pair)
    return torch.nn.functional.pad(x, flat)

kernel_name = 'sequential_preLN__gqa_block_cached__mixer_channel_mlp__decode'

def setup_inputs():

    _w = (lambda a: (lambda t: t.to(torch.bfloat16) if t.is_floating_point() else t)(torch.as_tensor(a)))
    def _A_setup():
        B, Sq, D = 1, 1, 512
        Hq, Hkv, Sk, Dh = 32, 8, 65536, 128
        assert Hq % Hkv == 0, (Hq, Hkv)
        return {
            "x": _w((lambda *s: torch.randn(*s, dtype=torch.bfloat16) * 0.05)(B, Sq, D)),
            "k_cache": _w((lambda *s: torch.randn(*s, dtype=torch.bfloat16) * 3.2)(B, Hkv, Sk, Dh)),
            "v_cache": _w((lambda *s: torch.randn(*s, dtype=torch.bfloat16) * 0.4)(B, Hkv, Sk, Dh)),
            "wq": _w((lambda *s: torch.randn(*s, dtype=torch.bfloat16) * 3.2)(D, Hq * Dh) * (D ** -0.5)),
            "wo": _w((lambda *s: torch.randn(*s, dtype=torch.bfloat16) * 0.4)(Hq * Dh, D) * ((Hq * Dh) ** -0.5)),
        }
    _A_in = _A_setup()

    def _B_setup():
        B, S, D, F = 1, 1, 512, 1792
        return {
            "x": _w((lambda *s: torch.randn(*s, dtype=torch.bfloat16) * 0.05)(B, S, D)),
            "w1": _w((lambda *s: torch.randn(*s, dtype=torch.bfloat16) * 3.2)(D, F) * (D ** -0.5)),
            "b1": _w((lambda *s: torch.randn(*s, dtype=torch.bfloat16) * 3.2)(F)),
            "w2": _w((lambda *s: torch.randn(*s, dtype=torch.bfloat16) * 0.4)(F, D) * (F ** -0.5)),
            "b2": _w((lambda *s: torch.randn(*s, dtype=torch.bfloat16) * 0.8)(D)),
        }
    _B_in = _B_setup()

    return {
        "A_x": _A_in["x"],
        "A_k_cache": _A_in["k_cache"],
        "A_v_cache": _A_in["v_cache"],
        "A_wq": _A_in["wq"],
        "A_wo": _A_in["wo"],
        "B_x": _B_in["x"],
        "B_w1": _B_in["w1"],
        "B_b1": _B_in["b1"],
        "B_w2": _B_in["w2"],
        "B_b2": _B_in["b2"],
    }

def reference(A_x, A_k_cache, A_v_cache, A_wq, A_wo, B_x, B_w1, B_b1, B_w2, B_b2):
    def _A_ref(x, k_cache, v_cache, wq, wo):
        B, Sq, D = x.shape
        Hq, Dh = 32, 128
        Hkv = k_cache.shape[1]
        rep = Hq // Hkv
        q = (lambda x, *d: x.permute(*d))((x @ wq).reshape(B, Sq, Hq, Dh), 0, 2, 1, 3)
        k = (lambda x, n, axis: torch.repeat_interleave(x, n, dim=axis))(k_cache, rep, axis=1)
        v = (lambda x, n, axis: torch.repeat_interleave(x, n, dim=axis))(v_cache, rep, axis=1)
        scores = torch.einsum("bhqd,bhkd->bhqk", q, k) * (Dh ** -0.5)
        p = _softmax(scores, axis=-1)
        o = torch.einsum("bhqk,bhkd->bhqd", p, v)
        return (lambda x, *d: x.permute(*d))(o, 0, 2, 1, 3).reshape(B, Sq, Hq * Dh) @ wo

    def _B_ref(x, w1, b1, w2, b2):
        y = _layernorm(x, axis=-1)
        h = _gelu(torch.einsum("bsd,df->bsf", y, w1) + b1)
        return torch.einsum("bsf,fd->bsd", h, w2) + b2

    x = A_x
    h = x + _A_ref(_layernorm(x, axis=-1), A_k_cache, A_v_cache, A_wq, A_wo)
    h2 = h + _B_ref(_layernorm(h, axis=-1), B_w1, B_b1, B_w2, B_b2)
    return h2
```

```python
import re
TRANS = ("v_exp_f32", "v_log_f32", "v_rcp_f32", "v_rsq_f32", "v_sqrt_f32", "v_sin_f32", "v_cos_f32")
def regs(tok):
    tok = tok.strip()
    tok = re.sub(r"^-|^\||\|$", "", tok)
    m = re.fullmatch(r"([vs])(\d+)", tok)
    if m: return [(m.group(1), int(m.group(2)))]
    m = re.fullmatch(r"([vs])\[(\d+):(\d+)\]", tok)
    if m: return [(m.group(1), i) for i in range(int(m.group(2)), int(m.group(3)) + 1)]
    if tok == "vcc": return [("s", 106), ("s", 107)]
    if tok == "vcc_lo": return [("s", 106)]
    if tok == "vcc_hi": return [("s", 107)]
    return []
class Ins:
    def __init__(self, line):
        self.line = line
        body = line.split(";")[0].strip()
        parts = body.split(None, 1)
        self.op = parts[0]
        rest = parts[1] if len(parts) > 1 else ""
        toks = [t.strip() for t in re.split(r",(?![^\[]*\])", rest)]
        self.mods = ""
        if toks:
            l = toks[-1].split(None, 1)
            if len(l) > 1: toks[-1] = l[0]; self.mods = l[1]
        self.toks = toks
        op = self.op
        self.valu = op.startswith("v_") and not op.startswith("v_mfma")
        self.mfma = op.startswith("v_mfma")
        self.vmem = op.startswith("buffer_") or op.startswith("global_")
        self.ds = op.startswith("ds_")
        self.trans = any(op.startswith(t) for t in TRANS)
        self.dot = op.startswith("v_dot")
        self.dpp = ("quad_perm" in self.mods or "row_" in self.mods or "wave_" in self.mods)
        self.perml = op.startswith("v_permlane")
        self.rdlane = op.startswith("v_readlane") or op.startswith("v_readfirstlane")
        R = [regs(t) for t in toks]
        self.w = []; self.r = []; self.srcC = []; self.ab = []; self.dppsrc = []; self.stdata = []
        if self.valu:
            self.w = list(R[0]); self.r = [x for t in R[1:] for x in t]
            if self.perml: self.w += R[1]; self.r += R[0]
            if op.startswith(("v_fmac", "v_dot2c", "v_writelane")): self.r += R[0]
            if self.dpp: self.dppsrc = R[1]; self.r += R[0]
            if op.startswith("v_cndmask") and len(toks) == 3: self.r += regs("vcc")
        elif self.mfma:
            self.w = list(R[0]); self.ab = R[1] + R[2]; self.srcC = R[3]; self.r = self.ab + self.srcC
        elif self.vmem:
            if "load" in op: self.w = list(R[0]); self.r = [x for t in R[1:] for x in t]
            else:
                self.r = [x for t in R for x in t]
                if "atomic" in op and "sc0" in self.mods: self.w = list(R[0])
                if "x4" in op or "x3" in op: self.stdata = R[0]
        elif self.ds:
            if "read" in op or "rtn" in op or "permute" in op: self.w = list(R[0]); self.r = [x for t in R[1:] for x in t]
            else: self.r = [x for t in R for x in t]
        else:
            if R and not op.startswith(("s_cmp", "s_bitcmp", "s_cbranch", "s_branch", "s_waitcnt", "s_nop", "s_sleep", "s_setprio", "s_barrier", "s_endpgm")):
                self.w = list(R[0]); self.r = [x for t in R[1:] for x in t]
            else: self.r = [x for t in R for x in t]
        self.states = 1
        if op == "s_nop": self.states = int(toks[0]) + 1
class Asm:
    def __init__(self): self.lines = []; self.nl = 0
    def __call__(self, text):
        for l in text.split("\n"):
            l = l.strip()
            if l: self.lines.append(l)
    def label(self, base="L"):
        self.nl += 1; return f"{base}_{self.nl}"
    def finish(self):
        out = []
        st = {}; saved = {}; dead = False; npad = 0
        def merge(a, b):
            r = dict(a)
            for k, v in b.items(): r[k] = min(v, r.get(k, 99))
            return r
        for l in self.lines:
            if l.startswith(";") or l.startswith("."): out.append(l); continue
            if l.split(";")[0].strip().endswith(":"):
                name = l.split(":")[0].strip()
                if name in saved: st = saved[name] if dead else merge(st, saved[name])
                elif dead: st = {}
                dead = False
                out.append(l); continue
            i = Ins(l)
            need = 0
            def req(kind, rs, n):
                nonlocal need
                for x in rs:
                    a = st.get((kind, x))
                    if a is not None and n - a > need: need = n - a
            vr = [x for x in i.r if x[0] == "v"]; sr = [x for x in i.r if x[0] == "s"]
            vw = [x for x in i.w if x[0] == "v"]
            if i.valu:
                req("valu", i.dppsrc, 2)
                if i.perml: req("valu", vr, 2)
                if i.rdlane: req("valu", vr, 1)
                if not i.trans: req("trans", vr, 1)
                req("valus", sr, 4 if (i.rdlane or i.op.startswith("v_writelane")) else 2)
                req("st", vw, 2)
                req("mfma", vr + vw, 8)
                req("mfmaC", vw, 3)
                if i.dot: req("dot", [x for x in vr if x not in i.w], 3)
                else: req("dot", vr + vw, 3)
            if i.mfma:
                req("valu", vr, 2); req("dot", vr, 3)
                req("mfma", i.ab, 8)
                for x in i.srcC:
                    a = st.get(("mfma", x))
                    if a is not None and st.get(("mfmaD", x)) != tuple(i.srcC) and 6 - a > need: need = 6 - a
                if i.w != i.srcC: req("mfma", [x for x in vw if x not in i.srcC], 8)
            if i.vmem or i.ds:
                req("mfma", vr + vw, 8); req("st", vw, 1); req("dot", vr, 3)
                if i.vmem: req("valus", sr, 5)
            if need > 0:
                out.append(f"s_nop {need - 1}"); npad += 1
                for k in list(st):
                    if k[0] != "mfmaD": st[k] += need
            out.append(l)
            for k in list(st):
                if k[0] == "mfmaD": continue
                st[k] += i.states
                if st[k] > 12: del st[k]
            for x in i.w:
                for kind in ("valu", "trans", "valus", "mfma", "dot"): st.pop((kind, x), None)
            if i.valu:
                for x in i.w:
                    if x[0] == "v":
                        st[("valu", x)] = 0
                        if i.trans: st[("trans", x)] = 0
                        if i.dot: st[("dot", x)] = 0
                    else: st[("valus", x)] = 0
            if i.mfma:
                for x in i.w: st[("mfma", x)] = 0; st[("mfmaD", x)] = tuple(i.w)
                for x in i.srcC: st[("mfmaC", x)] = 0
            for x in i.stdata: st[("st", x)] = 0
            if i.op.startswith("s_cbranch") or i.op == "s_branch":
                t = i.toks[0]
                cp = {k: v for k, v in st.items() if k[0] != "mfmaD"}
                saved[t] = merge(saved[t], cp) if t in saved else cp
                if i.op == "s_branch": dead = True
            if i.op == "s_endpgm": dead = True
        return "\n".join(("" if (x.endswith(":") or x.startswith(".") or x.startswith(";")) else "    ") + x for x in out) + "\n"
```

```python
import sys, struct
from asmlib import Asm
KN = "sequential_preLN__gqa_block_cached__mixer_channel_mlp__decode"
def f2u(x): return struct.unpack("<I", struct.pack("<f", x))[0]
L2E = f2u(1.4426950408889634); NL2E = f2u(-1.4426950408889634)
SCALE = f2u(0.08838834764831845)
WS_E, WS_TK, WS_Q, WS_P1, WS_ML, WS_P2, WS_P3 = 0x0, 0x1000, 0x10000, 0x20000, 0xA0000, 0xB0000, 0xC0000
WS_STAMP = 0x10000000
L_FLAG, L_T4, L_Q, L_OP, L_ML, L_OLD, L_H, L_Y, L_PRE, L_G = 0x0, 0x10, 0x100, 0x1000, 0x3000, 0x3100, 0x3200, 0x3600, 0x3A00, 0x4200
L_REQ, L_CNT, L_CNT2, L_TAB = 0x20, 0x30, 0x34, 0x600
LDS_SIZE = 0x5000
PX, PK, PV, PWQ, PWO, PW1, PB1, PW2, PB2, POUT, PWS = 32, 34, 36, 38, 40, 44, 46, 48, 50, 52, 56
GLIMIT = 1000000
HDR = open("cdna_kernels/" + KN + ".s.ref").read().split("; Override launch")[0]

def gen(stamps=False, dry=True, tau=8.0, wpol="nt", pace=None, nstat=12, req='top', cs=2, nv=12, early=0, edyn=12, eper=4, gq=(0,0), g2=(0,0), g3=(0,0), g4=(0,0), eflag=0):
    A = Asm()
    def v4(r): return f"v[{r}:{r+3}]"
    def v2(r): return f"v[{r}:{r+1}]"
    def srd(s, ptr, n):
        A(f"s_mov_b32 s{s}, s{ptr}\ns_mov_b32 s{s+1}, s{ptr+1}\ns_mov_b32 s{s+2}, {n}\ns_mov_b32 s{s+3}, 0x20000")
    def setexec(lo, hi):
        A(f"s_and_b32 exec_lo, s60, 0x{lo:x}\ns_and_b32 exec_hi, s61, 0x{hi:x}")
    def live(): A("s_mov_b64 exec, s[60:61]")
    def stamp(k):
        if stamps:
            A(f"s_memrealtime s[58:59]\ns_waitcnt lgkmcnt(0)\nv_writelane_b32 v11, s58, {2*k}\nv_writelane_b32 v11, s59, {2*k+1}")
    def rnd(r, src=None): A(f"v_cvt_pk_bf16_f32 v{r}, 0, v{r if src is None else src}")
    def transp(dst, src):
        for mm in range(4):
            for hl in range(2):
                for q in range(4):
                    A(f"v_perm_b32 v{dst + (2*mm+hl)*4 + q}, v{src + (2*q+1)*4 + mm}, v{src + (2*q)*4 + mm}, s{77 + hl}")
    def tags_from_T4(vt, t=4):
        A(f"v_mov_b32 v{t}, {vt}\nv_lshrrev_b32 v{t+1}, 8, v{t}\nv_lshrrev_b32 v{t+2}, 16, v{t}\nv_lshrrev_b32 v{t+3}, 24, v{t}")
    def tag4(dst, src, t=4):
        for k in range(4): A(f"v_bfi_b32 v{dst+k}, s76, v{t+k}, v{src+k}")
    def ldswait(off, slp):
        Lp, Ld = A.label("Lq"), A.label("Lqd")
        A(f"""
        s_mov_b32 s63, 2000000
        {Lp}:
        ds_read_b32 v20, v10 offset:{off}
        s_waitcnt lgkmcnt(0)
        v_readfirstlane_b32 s30, v20
        s_cmp_lg_u32 s30, 0
        s_cbranch_scc1 {Ld}
        s_sleep {slp}
        s_sub_u32 s63, s63, 1
        s_cmp_lg_u32 s63, 0
        s_cbranch_scc1 {Lp}
        {Ld}:
        """)
    def prepoll(d, vo, so, n):
        Lp, Ld = A.label("Lp"), A.label("Lpd")
        A(f"s_cbranch_execz {Ld}\ns_mov_b32 s63, {GLIMIT}\n{Lp}:")
        A(f"buffer_load_dwordx4 {v4(d)}, v{vo}, s[12:15], s{so} offen sc1\ns_waitcnt vmcnt(0)\nv_xor_b32 v20, v{d}, v4")
        for k in range(1, 4): A(f"v_bitop3_b32 v20, v20, v{d+k}, v{4+k} bitop3:0xf6")
        A(f"""
        v_and_b32 v20, 0xff, v20
        v_cmp_eq_u32 vcc, 0, v20
        s_bcnt1_i32_b64 s30, vcc
        s_cmp_ge_u32 s30, {n}
        s_cbranch_scc1 {Ld}
        s_sub_u32 s63, s63, 1
        s_cmp_lg_u32 s63, 0
        s_cbranch_scc1 {Lp}
        {Ld}:
        """)
    def gather(groups, tmp, ws=(0, 0), block1=False, mask=None):
        Lp, Ld = A.label("Lg"), A.label("Lgd")
        W, slp = ws
        if W and not block1:
            for gr in groups:
                for d, vo, so, imm in gr: A(f"v_not_b32 v{d}, v4")
        for gi in range(len(groups)):
            if mask is None: A(f"s_mov_b64 s[{64+2*gi}:{65+2*gi}], s[60:61]")
            else: A(f"s_and_b32 s{64+2*gi}, s60, 0x{mask[0]:x}\ns_and_b32 s{65+2*gi}, s61, 0x{mask[1]:x}")
        A(f"s_mov_b32 s63, {GLIMIT}\n{Lp}:")
        for gi, gr in enumerate(groups):
            Ls = A.label("Ls")
            A(f"s_mov_b64 exec, s[{64+2*gi}:{65+2*gi}]\ns_cbranch_execz {Ls}")
            for d, vo, so, imm in gr: A(f"buffer_load_dwordx4 {v4(d)}, v{vo}, s[12:15], s{so} offen offset:{imm} sc1")
            A(f"{Ls}:")
        A("s_mov_b64 s[86:87], 0")
        if W and block1:
            Lw = A.label("Lb")
            A(f"s_cmp_lg_u32 s63, {GLIMIT}\ns_cbranch_scc1 {Lw}\ns_waitcnt vmcnt(0)\n{Lw}:")
        A(f"s_waitcnt vmcnt({W})")
        if slp: A(f"s_sleep {slp}")
        for gi, gr in enumerate(groups):
            Ls = A.label("Ls")
            A(f"s_mov_b64 exec, s[{64+2*gi}:{65+2*gi}]\ns_cbranch_execz {Ls}")
            first = True
            for d, vo, so, imm in gr:
                for k in range(4):
                    if first: A(f"v_xor_b32 v{tmp}, v{d+k}, v{4+k}"); first = False
                    else: A(f"v_bitop3_b32 v{tmp}, v{tmp}, v{d+k}, v{4+k} bitop3:0xf6")
            A(f"v_and_b32 v{tmp}, 0xff, v{tmp}\nv_cmp_ne_u32 s[{64+2*gi}:{65+2*gi}], 0, v{tmp}")
            A(f"s_or_b64 s[86:87], s[86:87], s[{64+2*gi}:{65+2*gi}]\n{Ls}:")
        A(f"s_cmp_eq_u64 s[86:87], 0\ns_cbranch_scc1 {Ld}\ns_sub_u32 s63, s63, 1\ns_cmp_lg_u32 s63, 0\ns_cbranch_scc1 {Lp}\n{Ld}:")
        live()
    def rec_groups(n, dst, vo, sbase):
        gs = []
        for i in range(n):
            if i % 4 == 0: gs.append([])
            gs[-1].append((dst + 4*i, vo, sbase + i // 4, (i % 4) * 1024))
        return gs
    def sbases(s, n=4):
        for k in range(1, n): A(f"s_add_u32 s{s+k}, s{s}, {4096*k}")
    def sum_recs(n, src):
        idx = list(range(n))
        while len(idx) > 1:
            nxt = []
            for a in range(0, len(idx) - 1, 2):
                for k in range(4): A(f"v_add_f32 v{src+4*idx[a]+k}, v{src+4*idx[a]+k}, v{src+4*idx[a+1]+k}")
                nxt.append(idx[a])
            if len(idx) % 2: nxt.append(idx[-1])
            idx = nxt
        half_scatter(src)
    def half_scatter(a):
        A(f"v_permlane32_swap_b32 v{a}, v{a+2}\nv_permlane32_swap_b32 v{a+1}, v{a+3}")
        A(f"v_add_f32 v{a}, v{a}, v{a+2}\nv_add_f32 v{a+1}, v{a+1}, v{a+3}")
    def layernorm(x, t):
        A(f"v_readfirstlane_b32 s30, v{x}")
        for i in range(8): A(f"v_subrev_f32 v{t+i}, s30, v{x+i}")
        A(f"v_add_f32 v{t+8}, v{t}, v{t+1}\nv_mul_f32 v{t+9}, v{t}, v{t}\nv_add_f32 v{t+10}, v{t+2}, v{t+3}\nv_mul_f32 v{t+11}, v{t+1}, v{t+1}")
        A(f"v_add_f32 v{t+8}, v{t+8}, v{t+4}\nv_fmac_f32 v{t+9}, v{t+2}, v{t+2}\nv_add_f32 v{t+10}, v{t+10}, v{t+5}\nv_fmac_f32 v{t+11}, v{t+3}, v{t+3}")
        A(f"v_add_f32 v{t+8}, v{t+8}, v{t+6}\nv_fmac_f32 v{t+9}, v{t+4}, v{t+4}\nv_add_f32 v{t+10}, v{t+10}, v{t+7}\nv_fmac_f32 v{t+11}, v{t+5}, v{t+5}")
        A(f"v_fmac_f32 v{t+9}, v{t+6}, v{t+6}\nv_fmac_f32 v{t+11}, v{t+7}, v{t+7}")
        A(f"v_add_f32 v{t+8}, v{t+8}, v{t+10}\nv_add_f32 v{t+9}, v{t+9}, v{t+11}")
        A(f"v_permlane32_swap_b32 v{t+8}, v{t+9}\nv_add_f32 v{t+8}, v{t+8}, v{t+9}")
        for k in (8, 4, 2, 1): A(f"v_add_f32_dpp v{t+8}, v{t+8}, v{t+8} row_ror:{k} row_mask:0xf bank_mask:0xf")
        A(f"v_readlane_b32 s31, v{t+8}, 0\nv_readlane_b32 s89, v{t+8}, 16\nv_readlane_b32 s90, v{t+8}, 32\nv_readlane_b32 s91, v{t+8}, 48")
        A(f"v_mov_b32 v{t}, s31\nv_mov_b32 v{t+1}, s90\nv_add_f32 v{t}, s89, v{t}\nv_add_f32 v{t+1}, s91, v{t+1}")
        A(f"v_mul_f32 v{t}, 0x3b000000, v{t}\nv_mul_f32 v{t+1}, 0x3b000000, v{t+1}")
        A(f"v_fma_f32 v{t+1}, -v{t}, v{t}, v{t+1}\nv_add_f32 v{t}, s30, v{t}")
        A(f"v_max_f32 v{t+1}, 0, v{t+1}")
        rnd(t+1); rnd(t)
        A(f"v_add_f32 v{t+1}, 0x{f2u(1e-5):x}, v{t+1}")
        rnd(t+1)
        A(f"v_sqrt_f32 v{t+1}, v{t+1}")
        for i in range(8): A(f"v_sub_f32 v{x+i}, v{x+i}, v{t}")
        rnd(t+1)
        A(f"v_rcp_f32 v{t+2}, v{t+1}")
        for i in range(8): rnd(x+i)
        for i in range(8): A(f"v_mul_f32 v{t+3+i}, v{x+i}, v{t+2}")
        for i in range(8): A(f"v_fma_f32 v{x+i}, -v{t+3+i}, v{t+1}, v{x+i}")
        for i in range(8): A(f"v_fmac_f32 v{t+3+i}, v{x+i}, v{t+2}")
        for i in range(8): rnd(x+i, t+3+i)
    def unpack8(dst, src):
        for k in range(4): A(f"v_lshlrev_b32 v{dst+2*k}, 16, v{src+k}\nv_and_b32 v{dst+2*k+1}, 0xffff0000, v{src+k}")
    def pack8(dst, src):
        for k in range(4): A(f"v_perm_b32 v{dst+k}, v{src+2*k+1}, v{src+2*k}, s78")
    def select_tag(dst, acc):
        for jj in range(8):
            m = 0x00010001 << jj
            setexec(m, m); tag4(dst, acc + 4*jj)
    def exit_():
        A("s_branch L_exit")

    BA, BB, BC = 64, 128, 192
    A(f"""
    s_cmp_ge_u32 s2, 256
    s_cbranch_scc1 L_end
    s_load_dwordx2 s[16:17], s[0:1], 0
    s_load_dwordx2 s[20:21], s[0:1], 24
    s_load_dwordx2 s[12:13], s[0:1], 96
    s_load_dwordx2 s[4:5], s[0:1], 8
    s_load_dwordx2 s[8:9], s[0:1], 16
    v_lshrrev_b32 v1, 6, v0
    v_and_b32 v0, 63, v0
    v_mov_b32 v10, 0
    v_mov_b32 v11, 0
    v_readfirstlane_b32 s3, v1
    ds_write_b32 v10, v10 offset:{L_FLAG}
    s_lshr_b32 s24, s2, 5
    s_and_b32 s25, s2, 31
    s_mov_b64 s[60:61], -1
    s_mov_b32 s76, 0xff
    s_mov_b32 s77, 0x05040100
    s_mov_b32 s78, 0x07060302
    v_lshlrev_b32 v2, 4, v0
    s_mov_b32 s18, 1024
    s_mov_b32 s19, 0x20000
    s_mov_b32 s22, {512*8192}
    s_mov_b32 s23, 0x20000
    s_mov_b32 s14, 0x20000000
    s_mov_b32 s15, 0x20000
    s_mov_b32 s6, 0x8000000
    s_mov_b32 s7, 0x20000
    s_mov_b32 s10, 0x8000000
    s_mov_b32 s11, 0x20000
    v_lshrrev_b32 v22, 1, v0
    v_lshlrev_b32 v22, 17, v22
    v_and_b32 v23, 1, v0
    v_lshl_add_u32 v22, v23, 4, v22
    s_and_b32 s93, s25, 7
    s_lshl_b32 s93, s93, 2
    s_lshr_b32 s31, s25, 3
    s_add_u32 s93, s93, s31
    s_lshl_b32 s30, s93, 5
    s_lshl_b32 s31, s24, 10
    s_add_u32 s30, s30, s31
    v_and_b32 v1, 3, v0
    v_lshlrev_b32 v1, 4, v1
    v_bfe_u32 v3, v0, 2, 2
    v_lshl_add_u32 v1, v3, 8, v1
    v_lshrrev_b32 v21, 4, v0
    v_lshl_add_u32 v1, v21, 6, v1
    s_lshl_b32 s26, s24, 24
    s_and_b32 s31, s3, 3
    s_lshl_b32 s31, s31, 13
    s_add_u32 s26, s26, s31
    s_lshl_b32 s31, s25, 17
    s_add_u32 s27, s26, s31
    s_add_u32 s28, s27, 4096
    """)
    stamp(0)
    A("""
    s_cmp_lg_u32 s3, 0
    s_waitcnt lgkmcnt(0)
    s_cbranch_scc1 L_n0
    s_setprio 3
    buffer_load_dwordx4 v[24:27], v2, s[16:19], 0 offen
    buffer_load_dword v9, v10, s[12:15], 0 offen sc1
    """)
    for i in range(16):
        A(f"buffer_load_dwordx4 {v4(64+4*i)}, v22, s[20:23], s30 offen")
        if i < 15: A("s_add_u32 s30, s30, 8192")
    A("s_barrier\ns_branch L_h0\nL_n0:\ns_cmp_lt_u32 s3, 4\ns_barrier\ns_cbranch_scc1 L_h123")
    def loads(buf, kind):
        for i in range(8):
            r = buf + (0 if kind == "K" else 32) + 4*i
            A(f"buffer_load_dwordx4 {v4(r)}, v{1 if kind == 'K' else 2}, s[{4 if kind == 'K' else 8}:{7 if kind == 'K' else 11}], s{27 + i // 4} offen offset:{(i % 4) * 1024} nt")
    loads(BC, "K"); loads(BC, "V")
    A(f"""
    s_and_b32 s3, s3, 3
    v_mov_b32 v3, 0xff7fffff
    v_mov_b32 v8, 0xff7fffff
    v_mov_b32 v4, 0
    v_mov_b32 v5, 0
    v_mov_b32 v6, 0
    s_lshl_b32 s30, s3, 2
    v_mov_b32 v22, s30
    v_add_u32 v7, 48, v22
    s_lshl_b32 s26, s24, 24
    s_sub_u32 s30, s27, s26
    s_add_u32 s30, s30, 0x18000
    v_mov_b32 v9, s30
    """)
    for r in range(32, 64): A(f"v_mov_b32 v{r}, 0")
    for buf in (BB, BA):
        A("s_add_u32 s27, s27, 0x8000\ns_add_u32 s28, s28, 0x8000")
        if pace is not None: A(f"s_waitcnt vmcnt({pace})")
        loads(buf, "K")
        if pace is not None: A(f"s_waitcnt vmcnt({pace})")
        loads(buf, "V")
    ldswait(L_FLAG, 1)
    A(f"ds_read_b128 v[12:15], v2 offset:{L_Q}\nds_read_b32 v20, v10 offset:{L_T4}")
    stamp(1)
    A(f"""
    L_stream:
    s_mov_b32 s29, 0
    s_mov_b32 s84, 0x88888888
    s_mov_b32 s85, 0x88888888
    s_mov_b32 s80, 0x{SCALE:x}
    s_mov_b32 s82, 0x{L2E:x}
    s_mov_b32 s63, 2000000
    s_mov_b32 s81, 2
    s_waitcnt lgkmcnt(0)
    v_readfirstlane_b32 s79, v20
    """)
    outl = []
    def step(X, Y, wk, wv):
        K = X; V = X + 32
        if Y is None: A(f"s_waitcnt vmcnt({wk})")
        else:
            Ls = A.label("Lk")
            outl.append(f"""
            {Ls}x:
            s_cmp_eq_u32 s30, -1
            s_cbranch_scc0 {Ls}e
            s_sleep 1
            ds_read_b32 v9, v7 offset:{L_TAB}
            s_sub_u32 s63, s63, 1
            s_cmp_lg_u32 s63, 0
            s_waitcnt lgkmcnt(0)
            s_cbranch_scc1 {Ls}r
            {Ls}e:
            s_mov_b32 s29, 1
            """ + (f"s_waitcnt vmcnt(8)\n" if early else "") + f"s_branch {Ls}")
            A(f"""
            s_waitcnt {'' if early == 1 else f'vmcnt({wk}) '}lgkmcnt(0)
            {Ls}r:
            v_readfirstlane_b32 s30, v9
            s_cmp_lt_i32 s30, 0
            s_cbranch_scc1 {Ls}x
            s_cbranch_execz {Ls}
            s_add_u32 s27, s26, s30
            s_add_u32 s28, s27, 4096
            """)
            if req == 'top': A(f"v_add_u32 v7, 16, v7\nds_write_b32 v22, v7 offset:{L_REQ}")
            loads(Y, "K")
            if early == 3:
                A(f"s_add_u32 s81, s81, 1\ns_cmp_lt_u32 s81, {edyn}\ns_cbranch_scc1 {Ls}")
            if early:
                loads(Y, "V")
                if early == 1: A("s_waitcnt vmcnt(24)")
            A(f"{Ls}:")
        D = [24, 28] + [K + 4*i for i in range(6)]
        S = K + 24
        for i in range(8): A(f"v_mfma_f32_16x16x32_bf16 {v4(D[i])}, {v4(K+4*i)}, v[12:15], 0")
        dm = "row_mask:0xf bank_mask:0xf"
        for i in range(8): A(f"v_add_f32_dpp v{D[i]+1}, v{D[i]}, v{D[i]+1} quad_perm:[0,0,0,0] {dm}")
        for i in range(8): A(f"v_add_f32_dpp v{D[i]+3}, v{D[i]+2}, v{D[i]+3} quad_perm:[2,2,2,2] {dm}")
        for i in range(8): A(f"v_add_f32_dpp v{S+i}, v{D[i]+1}, v{D[i]+3} quad_perm:[1,1,1,1] {dm}")
        for i in range(8): rnd(S+i)
        for i in range(8): A(f"v_mul_f32 v{S+i}, s80, v{S+i}")
        for i in range(8): rnd(S+i)
        Lf = A.label("Lf")
        A(f"""
        v_max3_f32 v20, v{S}, v{S+1}, v{S+2}
        v_max3_f32 v21, v{S+3}, v{S+4}, v{S+5}
        v_max3_f32 v20, v20, v{S+6}, v{S+7}
        v_max_f32 v20, v20, v21
        v_cmp_gt_f32 vcc, v20, v8
        s_and_b64 vcc, vcc, s[84:85]
        s_cbranch_execz {Lf}s
        s_cbranch_scc0 {Lf}
        {Lf}s:
        v_max_f32 v20, v20, v3
        v_mov_b32 v21, v20
        v_permlane32_swap_b32 v20, v21
        v_max_f32 v20, v20, v21
        v_mov_b32 v21, v20
        v_permlane16_swap_b32 v20, v21
        v_max_f32 v3, v20, v21
        v_mul_f32 v21, 0x{NL2E:x}, v3
        v_add_f32 v8, 0x{f2u(tau):x}, v3
        v_sub_f32 v20, v21, v6
        v_min_f32 v20, 0, v20
        v_exp_f32 v20, v20
        v_mov_b32 v6, v21
        v_mul_f32 v4, v4, v20
        v_mul_f32 v5, v5, v20
        """)
        for r in range(32, 64): A(f"v_mul_f32 v{r}, v{r}, v20")
        A(f"{Lf}:")
        for i in range(8): A(f"v_fma_f32 v{S+i}, v{S+i}, s82, v6")
        for i in range(8): A(f"v_exp_f32 v{S+i}, v{S+i}")
        for k in range(4): A(f"v_cvt_pk_bf16_f32 v{16+k}, v{S+2*k}, v{S+2*k+1}")
        for i in range(8): A(f"v_add_f32 v{4 + (i & 1)}, v{4 + (i & 1)}, v{S+i}")
        A(f"s_waitcnt vmcnt({wv})")
        if Y is not None:
            Ls = A.label("Lw")
            outl.append(f"{Ls}e:\ns_waitcnt vmcnt(0)\ns_branch {Ls}f")
            A(f"s_cmp_lg_u32 s29, 0\ns_cbranch_scc1 {Ls}e")
            if early == 3:
                A(f"s_cmp_ge_u32 s81, {edyn}\ns_cbranch_scc1 {Ls}\ns_waitcnt vmcnt(8)")
            if early in (0, 3):
                A(f"s_cbranch_execz {Ls}")
                loads(Y, "V")
                A(f"{Ls}:")
            if req == 'mid': A(f"v_add_u32 v7, 16, v7\nds_write_b32 v22, v7 offset:{L_REQ}")
            A(f"{Ls}f:")
        for mm in range(4):
            for hl in range(2):
                for q in range(4):
                    A(f"v_perm_b32 v{K + (2*mm+hl)*4 + q}, v{V + (2*q+1)*4 + mm}, v{V + (2*q)*4 + mm}, s{77 + hl}")
            if mm > 0:
                for j in (2*mm-2, 2*mm-1): A(f"v_mfma_f32_16x16x32_bf16 {v4(32+4*j)}, {v4(K+4*j)}, v[16:19], {v4(32+4*j)}")
            if mm == 3 and Y is not None: A(f"ds_read_b32 v9, v7 offset:{L_TAB}")
        for j in (6, 7): A(f"v_mfma_f32_16x16x32_bf16 {v4(32+4*j)}, {v4(K+4*j)}, v[16:19], {v4(32+4*j)}")
    step(BC, None, 40, 32)
    step(BB, None, 24, 16)
    if stamps: A("s_mov_b32 m0, 8")
    A("s_cbranch_execz L_sdone\n.p2align 3\nL_loop:")
    if stamps: A("s_memrealtime s[58:59]\ns_waitcnt lgkmcnt(0)\ns_min_u32 m0, m0, 15\ns_nop 0\nv_writelane_b32 v11, s58, m0\ns_add_u32 m0, m0, 1")
    step(BA, BB, 8, 16 if early else 8)
    A("s_cmp_lg_u32 s29, 0\ns_cbranch_scc1 L_sdone")
    step(BB, BA, 8, 16 if early else 8)
    if dry: A("s_cbranch_execz L_dryret")
    A("s_cmp_eq_u32 s29, 0\ns_cbranch_scc1 L_loop\nL_sdone:")
    stamp(2)
    A(f"""
    v_add_f32 v4, v4, v5
    v_mov_b32 v5, v4
    v_bfe_u32 v20, v0, 2, 2
    v_lshrrev_b32 v21, 4, v0
    v_permlane32_swap_b32 v4, v5
    v_add_f32 v4, v4, v5
    v_mov_b32 v5, v4
    v_lshlrev_b32 v22, 9, v20
    v_lshl_add_u32 v22, v21, 4, v22
    v_permlane16_swap_b32 v4, v5
    v_add_f32 v4, v4, v5
    s_lshl_b32 s30, s3, 11
    v_add_u32 v22, s30, v22
    s_lshl_b32 s30, s3, 2
    v_lshl_add_u32 v23, v20, 4, s30
    """)
    setexec(0x88888888, 0x88888888)
    A(f"ds_write_b32 v23, v3 offset:{L_ML}\nds_write_b32 v23, v4 offset:{L_ML+64}")
    for j in range(8): A(f"ds_write_b128 v22, {v4(32+4*j)} offset:{L_OP + 64*j}")
    A(f"""
    s_and_b64 exec, s[60:61], 1
    v_mov_b32 v20, 1
    ds_add_rtn_u32 v20, v10, v20 offset:{L_CNT}
    s_mov_b64 exec, s[60:61]
    v_lshrrev_b32 v21, 5, v0
    v_lshlrev_b32 v23, 4, v21
    """)
    for t in range(2): A(f"ds_read_b128 {v4(96+8*t)}, v23 offset:{L_ML + 32*t}\nds_read_b128 {v4(100+8*t)}, v23 offset:{L_ML + 64 + 32*t}")
    for t in range(2):
        for sw in range(4): A(f"ds_read_b128 {v4(64+16*t+4*sw)}, v2 offset:{L_OP + 2048*sw + 1024*t}")
    tags_from_T4("s79", 16)
    A(f"""
    v_and_b32 v22, 31, v0
    v_lshlrev_b32 v22, 4, v22
    v_lshl_add_u32 v22, v21, 14, v22
    v_and_b32 v23, 1, v0
    v_lshlrev_b32 v23, 10, v23
    v_lshl_add_u32 v23, v21, 9, v23
    s_lshl_b32 s92, s24, 16
    s_lshl_b32 s31, s25, 9
    s_add_u32 s92, s92, s31
    s_add_u32 s92, s92, {WS_P1}
    s_add_u32 s93, s92, 0x8000
    s_lshl_b32 s94, s24, 11
    s_lshl_b32 s31, s25, 4
    s_add_u32 s94, s94, s31
    s_add_u32 s94, s94, {WS_ML}
    s_waitcnt lgkmcnt(12)
    v_readfirstlane_b32 s30, v20
    s_cbranch_execz L_t1
    s_cmp_lg_u32 s30, 3
    s_cbranch_scc1 L_exit4
    L_t1:
    s_waitcnt lgkmcnt(8)
    """)
    for t in range(2): A(f"v_max3_f32 v{24+4*t}, v{96+8*t}, v{97+8*t}, v{98+8*t}")
    for t in range(2): A(f"v_max_f32 v{24+4*t}, v{24+4*t}, v{99+8*t}")
    for t in range(2): A(f"v_mul_f32 v{26+4*t}, s82, v{24+4*t}")
    for t in range(2):
        for k in range(4): A(f"v_mul_f32 v{96+8*t+k}, s82, v{96+8*t+k}")
    for t in range(2):
        for k in range(4): A(f"v_sub_f32 v{96+8*t+k}, v{96+8*t+k}, v{26+4*t}")
    for t in range(2):
        for k in range(4): A(f"v_exp_f32 v{96+8*t+k}, v{96+8*t+k}")
    for t in range(2):
        A(f"s_waitcnt lgkmcnt({4-4*t})")
        for k in range(4): A(f"v_mul_f32 v{64+16*t+k}, v{96+8*t}, v{64+16*t+k}")
        for sw in range(1, 4):
            for k in range(4): A(f"v_fmac_f32 v{64+16*t+k}, v{96+8*t+sw}, v{64+16*t+4*sw+k}")
        tag4(64+16*t, 64+16*t, 16)
        Ls = A.label("Ls")
        A(f"s_cbranch_execz {Ls}\nbuffer_store_dwordx4 {v4(64+16*t)}, v22, s[12:15], s{92+t} offen sc1\n{Ls}:")
    for t in range(2): A(f"v_mul_f32 v{25+4*t}, v{96+8*t}, v{100+8*t}")
    for sw in range(1, 4):
        for t in range(2): A(f"v_fmac_f32 v{25+4*t}, v{96+8*t+sw}, v{100+8*t+sw}")
    setexec(2, 2)
    A("v_mov_b32 v24, v28\nv_mov_b32 v25, v29")
    setexec(3, 3)
    tag4(24, 24, 16)
    A("s_cbranch_execz L_t2\nbuffer_store_dwordx4 v[24:27], v23, s[12:15], s94 offen sc1")
    stamp(3)
    A("L_exit4:\ns_add_u32 s3, s3, 4")
    exit_()
    for o in outl: A(o)
    A("L_t2:")
    live()
    def mm_addr():
        A(f"""
        v_and_b32 v23, 31, v0
        v_lshlrev_b32 v23, 3, v23
        v_lshrrev_b32 v22, 5, v0
        v_lshl_add_u32 v23, v22, 2, v23
        s_lshl_b32 s31, s3, 8
        v_add_u32 v23, s31, v23
        v_lshrrev_b32 v22, 4, v0
        v_lshlrev_b32 v22, 4, v22
        v_and_b32 v16, 1, v0
        v_lshl_add_u32 v16, v16, 6, v22
        v_add_u32 v16, s31, v16
        v_lshrrev_b32 v17, 5, v0
        v_lshlrev_b32 v17, 8, v17
        v_bfe_u32 v18, v0, 4, 1
        v_lshl_add_u32 v17, v18, 4, v17
        s_lshl_b32 s31, s3, 9
        v_add_u32 v17, s31, v17
        v_and_b32 v21, 15, v0
        v_lshlrev_b32 v21, 5, v21
        v_lshrrev_b32 v18, 5, v0
        v_lshl_add_u32 v21, v18, 4, v21
        s_lshl_b32 s30, s24, 2
        s_add_u32 s30, s30, s3
        s_lshl_b32 s96, s30, 9
        s_add_u32 s96, s96, {WS_ML}
        """)
    mm_addr()
    A(f"""
    s_lshl_b32 s92, s30, 14
    s_add_u32 s92, s92, {WS_P1}
    s_bfe_u32 s97, s25, 0x20001
    s_lshl_b32 s97, s97, 12
    s_lshl_b32 s31, s24, 9
    s_add_u32 s97, s97, s31
    s_and_b32 s31, s25, 1
    s_lshl_b32 s31, s31, 5
    s_add_u32 s97, s97, s31
    s_add_u32 s97, s97, {WS_P2}
    v_bfe_u32 v1, v0, 1, 3
    v_lshlrev_b32 v1, 6, v1
    v_and_b32 v18, 1, v0
    v_lshl_add_u32 v1, v18, 4, v1
    v_and_b32 v18, 15, v0
    v_lshlrev_b32 v18, 4, v18
    v_lshrrev_b32 v19, 4, v0
    v_lshl_add_u32 v18, v19, 9, v18
    v_mov_b32 v19, 1
    """)
    sbases(92)
    prepoll(28, 21, 96, 2*nv)
    stamp(2)
    gather(rec_groups(16, 64, 2, 92) + [[(28, 21, 96, 0)]], 20, g2, block1=True)
    stamp(5)
    dm = "row_mask:0xf bank_mask:0xf"
    A("v_and_b32 v26, 0xffff0000, v28\nv_and_b32 v24, 0xffff0000, v28")
    for k in (8, 4, 2, 1): A(f"v_max_f32_dpp v24, v24, v24 row_ror:{k} {dm}")
    A(f"""
    v_mov_b32 v25, v24
    v_mul_f32 v26, 0x{L2E:x}, v26
    v_permlane32_swap_b32 v24, v25
    v_max_f32 v24, v24, v25
    v_mul_f32 v24, 0x{L2E:x}, v24
    v_sub_f32 v26, v26, v24
    v_exp_f32 v26, v26
    v_mul_f32 v24, v26, v29
    """)
    for k in range(4): A(f"v_mul_f32_dpp v{32+k}, v26, v{64+k} row_newbcast:0 {dm}")
    for k in range(4): A(f"v_mul_f32_dpp v{36+k}, v26, v{68+k} row_newbcast:1 {dm}")
    rors = [8, 4, 2, 1]
    for i in range(2, 16):
        for k in range(4): A(f"v_fmac_f32_dpp v{32 + 4*(i&1) + k}, v26, v{64+4*i+k} row_newbcast:{i} {dm}")
        if rors: A(f"v_add_f32_dpp v24, v24, v24 row_ror:{rors.pop(0)} {dm}")
        elif i == 6: A("v_mov_b32 v25, v24")
        elif i == 7: A("v_permlane32_swap_b32 v24, v25")
        elif i == 8: A("v_add_f32 v24, v24, v25")
        elif i == 9: A("v_rcp_f32 v24, v24")
    for k in range(4): A(f"v_add_f32 v{32+k}, v{32+k}, v{36+k}")
    half_scatter(32)
    A(f"""
    v_mul_f32 v32, v32, v24
    v_mul_f32 v33, v33, v24
    v_cvt_pk_bf16_f32 v32, v32, v33
    ds_write_b32 v23, v32 offset:{L_Y}
    ds_read_b128 v[192:195], v16 offset:{L_Y}
    ds_read_b128 v[196:199], v16 offset:{L_Y+128}
    """)
    for s in range(2):
        A(f"s_waitcnt lgkmcnt({1-s})")
        for jj in range(8):
            A(f"v_mfma_f32_16x16x32_bf16 {v4(32+4*jj)}, {v4(128+32*s+4*jj)}, {v4(192+4*s)}, {'0' if s == 0 else v4(32+4*jj)}")
    setexec(0x00010001, 0x00020002)
    for jj in range(8): A(f"ds_write_b128 v17, {v4(32+4*jj)} offset:{L_PRE + 32*jj}")
    A(f"s_and_b64 exec, s[60:61], 1\nds_add_rtn_u32 v19, v10, v19 offset:{L_CNT2}")
    live()
    A(f"""
    ds_read_b128 v[192:195], v18 offset:{L_PRE}
    ds_read_b128 v[196:199], v18 offset:{L_PRE+256}
    s_waitcnt lgkmcnt(2)
    v_readfirstlane_b32 s30, v19
    s_cbranch_execz L_t2b
    s_cmp_lg_u32 s30, 3
    s_cbranch_scc1 L_exit
    L_t2b:
    s_waitcnt lgkmcnt(0)
    """)
    for k in range(4): A(f"v_add_f32 v{192+k}, v{192+k}, v{196+k}")
    for sw in (32, 16):
        for k in range(4): A(f"v_mov_b32 v{196+k}, v{192+k}")
        for k in range(4): A(f"v_permlane{sw}_swap_b32 v{192+k}, v{196+k}")
        for k in range(4): A(f"v_add_f32 v{192+k}, v{192+k}, v{196+k}")
    tag4(192, 192)
    setexec(0xffff, 0)
    A("s_cbranch_execz L_t3")
    A("buffer_store_dwordx4 v[192:195], v1, s[12:15], s97 offen sc1")
    stamp(6)
    exit_()
    A(f"""
    L_h0:
    v_lshrrev_b32 v20, 4, v0
    v_lshlrev_b32 v20, 22, v20
    v_and_b32 v21, 15, v0
    v_lshl_add_u32 v20, v21, 13, v20
    s_lshl_b32 s30, s25, 17
    v_add_u32 v20, s30, v20
    v_cmp_gt_u32 vcc, {4*nstat}, v0
    v_mov_b32 v28, -1
    v_cndmask_b32 v20, v28, v20, vcc
    v_lshlrev_b32 v21, 2, v0
    ds_write_b32 v21, v20 offset:{L_TAB}
    ds_write_b32 v21, v28 offset:{L_TAB+256}
    s_mov_b64 exec, 0xff
    ds_write_b32 v21, v10 offset:{L_REQ}
    s_mov_b64 exec, -1
    s_cmp_lg_u32 s25, 0
    s_cbranch_scc1 L_h0c
    v_mov_b32 v21, {32*nstat << cs}
    v_lshlrev_b32 v20, 8, v0
    s_lshl_b32 s30, s24, 10
    s_add_u32 s30, s30, {WS_TK}
    s_mov_b64 exec, 15
    buffer_store_dword v21, v20, s[12:15], s30 offen sc1
    s_mov_b64 exec, -1
    L_h0c:
    s_waitcnt vmcnt(16)
    """)
    stamp(5)
    unpack8(28, 24)
    A("v_add_u32 v9, 0x01010101, v9")
    layernorm(28, 40)
    pack8(36, 28)
    tags_from_T4('v9')
    for c in range(8): A(f"v_mov_b32 v{40+c}, 0")
    for a in range(8):
        A(f"s_waitcnt vmcnt({14 - 2*a})")
        qp = "[0,0,2,2]" if a < 4 else "[1,1,3,3]"
        for d in range(4):
            for hl in range(2): A(f"v_perm_b32 v{48+2*d+hl}, v{64+8*a+4+d}, v{64+8*a+d}, s{77+hl}")
        for c in range(8): A(f"v_dot2c_f32_bf16_dpp v{40+c}, v{36+(a&3)}, v{48+c} quad_perm:{qp} {dm}")
    for c in range(4): A(f"v_permlane32_swap_b32 v{40+c}, v{44+c}")
    for c in range(4): A(f"v_add_f32 v{40+c}, v{40+c}, v{44+c}")
    for c in range(4): A(f"v_mov_b32 v{44+c}, v{40+c}")
    for c in range(4): A(f"v_permlane16_swap_b32 v{40+c}, v{44+c}")
    for c in range(4): A(f"v_add_f32 v{40+c}, v{40+c}, v{44+c}")
    for k in (8, 4, 2):
        for c in range(4): A(f"v_add_f32_dpp v{40+c}, v{40+c}, v{40+c} row_ror:{k} {dm}")
    for c in range(4): rnd(40+c)
    tag4(40, 40)
    A(f"""
    v_lshlrev_b32 v20, 5, v23
    v_lshrrev_b32 v21, 5, v0
    v_lshl_add_u32 v20, v21, 4, v20
    s_lshl_b32 s92, s24, 11
    s_add_u32 s92, s92, {WS_Q}
    s_lshl_b32 s30, s93, 6
    s_add_u32 s30, s30, s92
    s_and_b32 exec_lo, s60, 3
    s_and_b32 exec_hi, s61, 3
    s_cbranch_execz L_qst
    buffer_store_dwordx4 v[40:43], v20, s[12:15], s30 offen sc1
    L_qst:
    s_mov_b64 exec, s[60:61]
    v_bfe_u32 v20, v0, 2, 2
    v_lshlrev_b32 v20, 9, v20
    v_lshrrev_b32 v21, 4, v0
    v_lshl_add_u32 v20, v21, 7, v20
    v_and_b32 v21, 3, v0
    v_lshl_add_u32 v20, v21, 5, v20
    """)
    stamp(1)
    gather([[(48, 20, 92, 0), (52, 20, 92, 16)]], 21, gq)
    pack8(56, 48)
    A(f"""
    ds_write_b128 v2, v[56:59] offset:{L_Q}
    ds_write_b32 v10, v9 offset:{L_T4}
    v_mov_b32 v21, 1
    s_waitcnt lgkmcnt(0)
    ds_write_b32 v10, v21 offset:{L_FLAG}
    s_setprio 0
    """)
    stamp(2)
    A(f"""
    s_cbranch_execnz L_hk
    L_h123:
    """)
    if dry:
        A("""
        s_cbranch_execz L_dryret
        v_mov_b32 v9, 0
        s_mov_b32 s29, 0
        s_mov_b32 s81, 0
        s_mov_b64 s[84:85], 0
        s_mov_b64 s[60:61], 0
        s_mov_b64 exec, 0
        s_cmp_eq_u32 s3, 3
        s_cbranch_scc1 L_h0c
        s_cmp_eq_u32 s3, 2
        s_cbranch_scc1 L_loop
        s_branch L_stream
        L_dryret:
        s_mov_b64 s[60:61], -1
        s_mov_b64 exec, -1
        """)
        stamp(1)
    ldswait(L_FLAG, 8)
    A(f"""
    ds_read_b32 v9, v10 offset:{L_T4}
    L_hk:
    s_load_dwordx16 s[32:47], s[0:1], 0
    s_load_dwordx8 s[48:55], s[0:1], 64
    s_waitcnt lgkmcnt(0)
    """)
    tags_from_T4('v9')
    RAW = [64, 96, 224, 32]
    A("s_and_b32 s30, s24, 1\ns_lshl_b32 s30, s30, 2\ns_sub_u32 s30, s25, s30\ns_lshl_b32 s88, s24, 2\ns_add_u32 s88, s88, s30\ns_cmp_lt_u32 s30, 4\ns_cselect_b32 s88, s88, 99")
    A(f"""
    v_bfe_u32 v20, v0, 4, 1
    v_lshlrev_b32 v20, 6, v20
    v_bfe_u32 v21, v0, 3, 1
    v_lshl_add_u32 v20, v21, 1, v20
    v_lshrrev_b32 v21, 5, v0
    v_add_u32 v20, v20, v21
    v_and_b32 v21, 7, v0
    v_lshlrev_b32 v21, 4, v21
    s_waitcnt vmcnt(0)
    s_cmp_lt_u32 s25, 24
    s_cbranch_scc1 L_hw
    """)
    srd(16, PWO, 4096*1024)
    A(f"""
    v_lshl_add_u32 v20, v20, 10, v21
    s_lshl_b32 s30, s24, 2
    s_add_u32 s30, s30, s3
    s_lshl_b32 s30, s30, 17
    s_and_b32 s31, s25, 7
    s_lshl_b32 s31, s31, 7
    s_add_u32 s30, s30, s31
    """)
    for s in range(2):
        for i in range(8):
            A(f"s_add_u32 s31, s30, {(8*i + 4*s)*1024}")
            A(f"buffer_load_dwordx4 {v4(RAW[s]+4*i)}, v20, s[16:19], s31 offen {wpol}")
    A("s_branch L_tr")
    A("L_hw:")
    A("s_cmp_ge_u32 s88, 28\ns_cbranch_scc1 L_srv")
    srd(16, PW1, 512*3584); srd(20, PW2, 1792*1024)
    A(f"""
    v_mul_u32_u24 v20, 3584, v20
    v_add_u32 v20, v20, v21
    s_mul_i32 s30, s3, {128*3584}
    s_lshl_b32 s31, s88, 7
    s_add_u32 s30, s30, s31
    """)
    for s in range(2):
        for i in range(8):
            A(f"s_add_u32 s31, s30, {(8*i + 4*s)*3584}")
            A(f"buffer_load_dwordx4 {v4(64+32*s+4*i)}, v20, s[16:19], s31 offen {wpol}")
    A(f"""
    v_lshrrev_b32 v20, 4, v0
    v_lshlrev_b32 v20, 10, v20
    v_and_b32 v21, 15, v0
    v_lshl_add_u32 v20, v21, 4, v20
    s_lshl_b32 s30, s88, 16
    s_lshl_b32 s31, s3, 8
    s_add_u32 s30, s30, s31
    """)
    for s in range(2):
        for i in range(8):
            A(f"s_add_u32 s31, s30, {(8*i + 4*s)*1024}")
            A(f"buffer_load_dwordx4 {v4(RAW[2+s]+4*i)}, v20, s[20:23], s31 offen {wpol}")
    srd(16, PB1, 3584)
    A(f"""
    v_bfe_u32 v20, v0, 2, 1
    v_lshlrev_b32 v20, 5, v20
    v_and_b32 v21, 3, v0
    v_lshl_add_u32 v20, v21, 3, v20
    v_lshrrev_b32 v21, 3, v0
    v_add_lshl_u32 v20, v20, v21, 1
    s_lshl_b32 s31, s88, 7
    buffer_load_ushort v8, v20, s[16:19], s31 offen
    v_and_b32 v20, 3, v0
    v_lshlrev_b32 v20, 5, v20
    v_bfe_u32 v21, v0, 2, 3
    v_add_u32 v20, v20, v21
    v_lshrrev_b32 v21, 5, v0
    v_lshl_add_u32 v20, v21, 4, v20
    s_lshl_b32 s31, s3, 7
    v_add_lshl_u32 v3, v20, s31, 1
    """)
    srd(16, PX, 1024)
    A("buffer_load_ushort v12, v3, s[16:19], 0 offen\nbuffer_load_ushort v13, v3, s[16:19], 0 offen offset:16")
    srd(16, PB2, 1024)
    A(f"""
    v_and_b32 v20, 1, v0
    v_lshlrev_b32 v20, 2, v20
    v_lshrrev_b32 v21, 4, v0
    v_add_u32 v20, v20, v21
    s_and_b32 s30, s88, 1
    s_lshl_b32 s30, s30, 3
    v_add_u32 v20, s30, v20
    s_bfe_u32 s30, s88, 0x30001
    s_add_u32 s92, s30, s31
    v_lshl_add_u32 v3, v20, 3, s92
    v_lshlrev_b32 v3, 1, v3
    s_lshl_b32 s30, s30, 4
    s_add_u32 s30, s30, s31
    v_add_lshl_u32 v15, v20, s30, 1
    buffer_load_ushort v14, v3, s[16:19], 0 offen
    """)
    srd(16, POUT, 1024)
    A("L_tr:\ns_waitcnt vmcnt(0)")
    for s in range(4): transp(128 + 32*s, RAW[s])
    for r in (8, 12, 13, 14): A(f"v_lshlrev_b32 v{r}, 16, v{r}")
    A("L_srv:")
    stamp(3)
    A(f"""
    s_lshl_b32 s95, s3, 2
    s_add_u32 s94, s95, {16*nstat}
    s_lshl_b32 s92, s24, 2
    s_lshr_b32 s31, s3, {cs}
    s_add_u32 s92, s92, s31
    s_lshl_b32 s92, s92, 8
    s_add_u32 s92, s92, {WS_TK}
    s_lshl_b32 s93, s31, {13 + cs}
    s_mov_b32 s63, 2000000
    v_mov_b32 v21, s95
    v_not_b32 v24, v9
    s_mov_b64 exec, 1
    L_sv:
    s_sub_u32 s63, s63, 1
    s_cmp_eq_u32 s63, 0
    s_cbranch_scc1 L_sve
    ds_read_b32 v20, v21 offset:{L_REQ}
    s_waitcnt lgkmcnt(0)
    v_readfirstlane_b32 s30, v20
    {"v_cmp_eq_u32 vcc, v24, v9" if eflag else ""}
    {"s_cbranch_vccnz L_sve" if eflag else ""}
    s_cmp_ge_u32 s30, s94
    s_cbranch_scc1 L_svd
    s_sleep 2
    {"" if eflag else "s_branch L_sv"}
    s_cmp_lt_u32 s30, {16*(nstat-1)}
    s_cbranch_scc1 L_sv
    s_and_b32 s31, s63, {eper - 1}
    s_cbranch_scc1 L_sv
    s_waitcnt vmcnt(2)
    buffer_load_dword v24, v10, s[12:15], s92 offen offset:128 sc1
    s_branch L_sv
    L_svd:
    v_mov_b32 v20, 1
    buffer_atomic_add v20, v10, s[12:15], s92 offen sc0 sc1
    v_mov_b32 v22, s94
    s_waitcnt vmcnt(0)
    v_readfirstlane_b32 s30, v20
    s_cmp_lt_u32 s30, {(512 << cs) - 1}
    {"s_cbranch_scc1 L_svn" if eflag else "s_branch L_svn"}
    buffer_store_dword v9, v10, s[12:15], s92 offen offset:128 sc1
    v_mov_b32 v24, v9
    L_svn:
    s_lshr_b32 s27, s30, {7 + cs}
    s_cmp_ge_u32 s27, 4
    s_cbranch_scc1 L_sve
    s_lshl_b32 s27, s27, 22
    s_bfe_u32 s31, s30, 0x{0x50000 + cs:x}
    s_lshl_b32 s31, s31, 17
    s_add_u32 s27, s27, s31
    s_bfe_u32 s31, s30, 0x{0x20005 + cs:x}
    s_lshl_b32 s31, s31, 15
    s_add_u32 s27, s27, s31
    s_and_b32 s31, s30, {(1 << cs) - 1}
    s_lshl_b32 s31, s31, 13
    s_add_u32 s27, s27, s31
    s_add_u32 s27, s27, s93
    v_mov_b32 v23, s27
    ds_write_b32 v22, v23 offset:{L_TAB}
    s_add_u32 s94, s94, 16
    s_cmp_lt_u32 s94, 496
    s_cbranch_scc1 L_sv
    L_sve:
    v_mov_b32 v22, s94
    v_bfrev_b32 v23, 1
    ds_write_b32 v22, v23 offset:{L_TAB}
    s_mov_b64 exec, -1
    s_waitcnt vmcnt(0)
    """)
    stamp(4)
    A(f"""
    s_cmp_lt_u32 s88, 28
    s_cbranch_scc1 L_t3
    s_cmp_lt_u32 s25, 24
    s_cbranch_scc1 L_exit
    s_branch L_t2
    L_t3:
    """)
    live()
    mm_addr()
    A(f"""
    s_lshl_b32 s92, s3, 12
    s_add_u32 s92, s92, {WS_P2}
    s_lshl_b32 s93, s3, 14
    s_add_u32 s93, s93, {WS_P3}
    s_lshl_b32 s97, s88, 5
    s_add_u32 s97, s97, s93
    s_lshl_b32 s31, s88, 10
    s_add_u32 s93, s93, s31
    v_and_b32 v1, 7, v0
    v_lshlrev_b32 v1, 11, v1
    v_lshrrev_b32 v18, 5, v0
    v_lshl_add_u32 v1, v18, 10, v1
    v_bfe_u32 v18, v0, 4, 1
    v_lshl_add_u32 v1, v18, 4, v1
    v_lshlrev_b32 v18, 2, v0
    s_lshl_b32 s31, s3, 7
    v_lshl_add_u32 v19, v0, 1, s31
    v_add_u32 v22, s31, v22
    """)
    for k in range(4): A(f"v_mov_b32 v{88+k}, 0")
    prepoll(64, 21, 96, 64)
    stamp(4)
    gather(rec_groups(4, 64, 2, 92), 20, g3)
    stamp(5)
    for k in range(4): A(f"v_add_f32 v{32+k}, v{64+k}, v{68+k}")
    for k in range(4): A(f"v_add_f32 v{36+k}, v{72+k}, v{76+k}")
    for k in range(4): A(f"v_add_f32 v{32+k}, v{32+k}, v{36+k}")
    half_scatter(32)
    rnd(32); rnd(33)
    A("v_add_f32 v12, v12, v32\nv_add_f32 v13, v13, v33")
    A("v_cvt_pk_bf16_f32 v20, v12, v13")
    A(f"ds_write_b32 v23, v20 offset:{L_H}")
    A("s_waitcnt lgkmcnt(0)\ns_cbranch_execz L_b3\ns_barrier\nL_b3:")
    A(f"ds_read_b128 v[24:27], v2 offset:{L_H}\nds_read_u16 v12, v15 offset:{L_H}\ns_waitcnt lgkmcnt(1)")
    unpack8(28, 24)
    layernorm(28, 40); layernorm(28, 40)
    pack8(24, 28)
    A(f"ds_write_b128 v2, v[24:27] offset:{L_Y}")
    A(f"ds_read_b128 v[80:83], v16 offset:{L_Y}\nds_read_b128 v[84:87], v16 offset:{L_Y+128}")
    for s in range(2):
        A(f"s_waitcnt lgkmcnt({1-s})")
        for jj in range(8):
            A(f"v_mfma_f32_16x16x32_bf16 {v4(32+4*jj)}, {v4(128+32*s+4*jj)}, {v4(80+4*s)}, {'0' if s == 0 else v4(32+4*jj)}")
    setexec(0x00010001, 0x00020002)
    for jj in range(8): A(f"ds_write_b128 v17, {v4(32+4*jj)} offset:{L_PRE + 32*jj}")
    live()
    A("s_waitcnt lgkmcnt(0)\ns_cbranch_execz L_b4\ns_barrier\nL_b4:")
    for k in range(8): A(f"ds_read_b32 v{24+k}, v18 offset:{L_PRE + 256*k}")
    A("""
    s_waitcnt lgkmcnt(0)
    v_add_f32 v24, v24, v25
    v_add_f32 v26, v26, v27
    v_add_f32 v28, v28, v29
    v_add_f32 v30, v30, v31
    v_add_f32 v24, v24, v26
    v_add_f32 v28, v28, v30
    v_add_f32 v24, v24, v28
    """)
    rnd(24)
    A("v_add_f32 v24, v24, v8")
    rnd(24)
    c1 = -2.0 * 0.7978845608028654 * 1.4426950408889634
    A(f"""
    v_mul_f32 v25, v24, v24
    v_mov_b32 v26, 0x{f2u(c1):x}
    v_fmac_f32 v26, 0x{f2u(c1*0.044715):x}, v25
    v_mul_f32 v25, v24, v26
    v_exp_f32 v25, v25
    v_add_f32 v25, 1.0, v25
    v_rcp_f32 v25, v25
    v_mul_f32 v24, v24, v25
    v_cvt_pk_bf16_f32 v24, v24, v24
    ds_write_b16 v19, v24 offset:{L_G}
    ds_read_b128 v[80:83], v22 offset:{L_G}
    ds_read_b128 v[84:87], v22 offset:{L_G+64}
    """)
    for s in range(2):
        A(f"s_waitcnt lgkmcnt({1-s})")
        for jj in range(8):
            A(f"v_mfma_f32_16x16x32_bf16 {v4(32+4*jj)}, {v4(192+32*s+4*jj)}, {v4(80+4*s)}, {'0' if s == 0 else v4(32+4*jj)}")
    select_tag(24, 32)
    setexec(0x00ff00ff, 0x00ff00ff)
    A("s_cbranch_execz L_t4\nbuffer_store_dwordx4 v[24:27], v1, s[12:15], s97 offen sc1")
    stamp(6)
    A("s_cmp_ge_u32 s88, 16\ns_cbranch_scc1 L_exit\nL_t4:")
    setexec(0xffffffff, 0x00ffffff)
    gather([[(88, 2, 93, 0)]], 20, g4, mask=(0xffffffff, 0x00ffffff))
    A(f"""
    v_mov_b32 v24, v88
    v_mov_b32 v25, v89
    v_mov_b32 v26, v90
    v_mov_b32 v27, v91
    v_lshlrev_b32 v12, 16, v12
    """)
    half_scatter(24)
    A("v_permlane16_swap_b32 v24, v25\nv_add_f32 v24, v24, v25")
    for k in (8, 4, 2): A(f"v_add_f32_dpp v24, v24, v24 row_ror:{k} {dm}")
    rnd(24)
    A("v_add_f32 v24, v24, v14")
    rnd(24)
    A("v_add_f32 v24, v24, v12\nv_cvt_pk_bf16_f32 v24, v24, v24")
    if dry: A("s_cbranch_execz L_dryret")
    A("s_mov_b32 exec_lo, 0x30003\ns_mov_b32 exec_hi, 0x30003\nbuffer_store_short v24, v3, s[16:19], 0 offen sc1")
    A("s_or_b32 s30, s3, s88\ns_cmp_lg_u32 s30, 0\ns_cbranch_scc1 L_exit7\ns_mov_b64 exec, 1\nbuffer_store_dword v9, v10, s[12:15], 0 offen sc1\nL_exit7:")
    stamp(7)
    A("L_exit:")
    if stamps:
        A(f"""
        s_mov_b64 exec, 0xffff
        s_lshl_b32 s30, s2, 3
        s_add_u32 s30, s30, s3
        s_lshl_b32 s30, s30, 6
        s_add_u32 s30, s30, {WS_STAMP}
        v_lshlrev_b32 v20, 2, v0
        buffer_store_dword v11, v20, s[12:15], s30 offen
        """)
    A("L_end:\ns_endpgm")
    body = A.finish()
    return (HDR + f"; @launch grid=(256,1,1) block=(512,1,1) lds={LDS_SIZE}\n" + f""".amdgcn_target "amdgcn-amd-amdhsa--gfx950"
.text
.globl {KN}_kernel
.p2align 8
.type {KN}_kernel,@function
{KN}_kernel:
""" + body + f""".section .rodata,"a"
.p2align 6
.amdhsa_kernel {KN}_kernel
  .amdhsa_next_free_vgpr 256
  .amdhsa_next_free_sgpr 102
  .amdhsa_accum_offset 256
  .amdhsa_group_segment_fixed_size 0
  .amdhsa_kernarg_size 104
  .amdhsa_user_sgpr_count 2
  .amdhsa_user_sgpr_kernarg_segment_ptr 1
  .amdhsa_system_sgpr_workgroup_id_x 1
.end_amdhsa_kernel
""")
if __name__ == "__main__":
    import json
    out = sys.argv[1]; kw = json.loads(sys.argv[2]) if len(sys.argv) > 2 else {}
    open(out, "w").write(gen(**kw))
```

```python
import sys, struct
from asmlib import Asm
KN = "sequential_preLN__gqa_block_cached__mixer_channel_mlp__decode"
def f2u(x): return struct.unpack("<I", struct.pack("<f", x))[0]
L2E = f2u(1.4426950408889634); NL2E = f2u(-1.4426950408889634)
SCALE = f2u(0.08838834764831845)
WS_E, WS_TK, WS_Q, WS_P1, WS_ML, WS_P2, WS_P3 = 0x0, 0x1000, 0x10000, 0x20000, 0xA0000, 0xB0000, 0xC0000
WS_STAMP = 0x10000000
L_FLAG, L_T4, L_Q, L_OP, L_ML, L_OLD, L_H, L_Y, L_PRE, L_G = 0x0, 0x10, 0x100, 0x1000, 0x3000, 0x3100, 0x3200, 0x3600, 0x3A00, 0x4200
L_REQ, L_CNT, L_CNT2, L_TAB = 0x20, 0x30, 0x34, 0x600
LDS_SIZE = 0x5000
PX, PK, PV, PWQ, PWO, PW1, PB1, PW2, PB2, POUT, PWS = 32, 34, 36, 38, 40, 44, 46, 48, 50, 52, 56
GLIMIT = 1000000
HDR = open("cdna_kernels/" + KN + ".s.ref").read().split("; Override launch")[0]

def gen(stamps=False, dry=True, tau=8.0, wpol="nt", pace=None, nstat=12, req='top', cs=2, nv=12, early=0, edyn=12, eper=4, gq=(0,0), g2=(0,0), g3=(0,0), g4=(0,0), eflag=0, dbg=0):
    A = Asm()
    def v4(r): return f"v[{r}:{r+3}]"
    def v2(r): return f"v[{r}:{r+1}]"
    def srd(s, ptr, n):
        A(f"s_mov_b32 s{s}, s{ptr}\ns_mov_b32 s{s+1}, s{ptr+1}\ns_mov_b32 s{s+2}, {n}\ns_mov_b32 s{s+3}, 0x20000")
    def setexec(lo, hi):
        A(f"s_and_b32 exec_lo, s60, 0x{lo:x}\ns_and_b32 exec_hi, s61, 0x{hi:x}")
    def live(): A("s_mov_b64 exec, s[60:61]")
    def stamp(k):
        if stamps:
            A(f"s_memrealtime s[58:59]\ns_waitcnt lgkmcnt(0)\nv_writelane_b32 v11, s58, {2*k}\nv_writelane_b32 v11, s59, {2*k+1}")
    def rnd(r, src=None): A(f"v_cvt_pk_bf16_f32 v{r}, 0, v{r if src is None else src}")
    def transp(dst, src):
        for mm in range(4):
            for hl in range(2):
                for q in range(4):
                    A(f"v_perm_b32 v{dst + (2*mm+hl)*4 + q}, v{src + (2*q+1)*4 + mm}, v{src + (2*q)*4 + mm}, s{77 + hl}")
    def tags_from_T4(vt, t=4):
        A(f"v_mov_b32 v{t}, {vt}\nv_lshrrev_b32 v{t+1}, 8, v{t}\nv_lshrrev_b32 v{t+2}, 16, v{t}\nv_lshrrev_b32 v{t+3}, 24, v{t}")
    def tag4(dst, src, t=4):
        for k in range(4): A(f"v_bfi_b32 v{dst+k}, s76, v{t+k}, v{src+k}")
    def ldswait(off, slp):
        Lp, Ld = A.label("Lq"), A.label("Lqd")
        A(f"""
        s_mov_b32 s63, 2000000
        {Lp}:
        ds_read_b32 v20, v10 offset:{off}
        s_waitcnt lgkmcnt(0)
        v_readfirstlane_b32 s30, v20
        s_cmp_lg_u32 s30, 0
        s_cbranch_scc1 {Ld}
        s_sleep {slp}
        s_sub_u32 s63, s63, 1
        s_cmp_lg_u32 s63, 0
        s_cbranch_scc1 {Lp}
        {Ld}:
        """)
    def prepoll(d, vo, so, n):
        Lp, Ld = A.label("Lp"), A.label("Lpd")
        A(f"s_cbranch_execz {Ld}\ns_mov_b32 s63, {GLIMIT}\n{Lp}:")
        A(f"buffer_load_dwordx4 {v4(d)}, v{vo}, s[12:15], s{so} offen sc1\ns_waitcnt vmcnt(0)\nv_xor_b32 v20, v{d}, v4")
        for k in range(1, 4): A(f"v_bitop3_b32 v20, v20, v{d+k}, v{4+k} bitop3:0xf6")
        A(f"""
        v_and_b32 v20, 0xff, v20
        v_cmp_eq_u32 vcc, 0, v20
        s_bcnt1_i32_b64 s30, vcc
        s_cmp_ge_u32 s30, {n}
        s_cbranch_scc1 {Ld}
        s_sub_u32 s63, s63, 1
        s_cmp_lg_u32 s63, 0
        s_cbranch_scc1 {Lp}
        {Ld}:
        """)
    def gather(groups, tmp, ws=(0, 0), block1=False, mask=None):
        Lp, Ld = A.label("Lg"), A.label("Lgd")
        W, slp = ws
        if W and not block1:
            for gr in groups:
                for d, vo, so, imm in gr: A(f"v_not_b32 v{d}, v4")
        for gi in range(len(groups)):
            if mask is None: A(f"s_mov_b64 s[{64+2*gi}:{65+2*gi}], s[60:61]")
            else: A(f"s_and_b32 s{64+2*gi}, s60, 0x{mask[0]:x}\ns_and_b32 s{65+2*gi}, s61, 0x{mask[1]:x}")
        A(f"s_mov_b32 s63, {GLIMIT}\n{Lp}:")
        for gi, gr in enumerate(groups):
            Ls = A.label("Ls")
            A(f"s_mov_b64 exec, s[{64+2*gi}:{65+2*gi}]\ns_cbranch_execz {Ls}")
            for d, vo, so, imm in gr: A(f"buffer_load_dwordx4 {v4(d)}, v{vo}, s[12:15], s{so} offen offset:{imm} sc1")
            A(f"{Ls}:")
        A("s_mov_b64 s[86:87], 0")
        if W and block1:
            Lw = A.label("Lb")
            A(f"s_cmp_lg_u32 s63, {GLIMIT}\ns_cbranch_scc1 {Lw}\ns_waitcnt vmcnt(0)\n{Lw}:")
        A(f"s_waitcnt vmcnt({W})")
        if slp: A(f"s_sleep {slp}")
        for gi, gr in enumerate(groups):
            Ls = A.label("Ls")
            A(f"s_mov_b64 exec, s[{64+2*gi}:{65+2*gi}]\ns_cbranch_execz {Ls}")
            first = True
            for d, vo, so, imm in gr:
                for k in range(4):
                    if first: A(f"v_xor_b32 v{tmp}, v{d+k}, v{4+k}"); first = False
                    else: A(f"v_bitop3_b32 v{tmp}, v{tmp}, v{d+k}, v{4+k} bitop3:0xf6")
            A(f"v_and_b32 v{tmp}, 0xff, v{tmp}\nv_cmp_ne_u32 s[{64+2*gi}:{65+2*gi}], 0, v{tmp}")
            A(f"s_or_b64 s[86:87], s[86:87], s[{64+2*gi}:{65+2*gi}]\n{Ls}:")
        A(f"s_cmp_eq_u64 s[86:87], 0\ns_cbranch_scc1 {Ld}\ns_sub_u32 s63, s63, 1\ns_cmp_lg_u32 s63, 0\ns_cbranch_scc1 {Lp}\n{Ld}:")
        live()
    def rec_groups(n, dst, vo, sbase):
        gs = []
        for i in range(n):
            if i % 4 == 0: gs.append([])
            gs[-1].append((dst + 4*i, vo, sbase + i // 4, (i % 4) * 1024))
        return gs
    def sbases(s, n=4):
        for k in range(1, n): A(f"s_add_u32 s{s+k}, s{s}, {4096*k}")
    def sum_recs(n, src):
        idx = list(range(n))
        while len(idx) > 1:
            nxt = []
            for a in range(0, len(idx) - 1, 2):
                for k in range(4): A(f"v_add_f32 v{src+4*idx[a]+k}, v{src+4*idx[a]+k}, v{src+4*idx[a+1]+k}")
                nxt.append(idx[a])
            if len(idx) % 2: nxt.append(idx[-1])
            idx = nxt
        half_scatter(src)
    def half_scatter(a):
        A(f"v_permlane32_swap_b32 v{a}, v{a+2}\nv_permlane32_swap_b32 v{a+1}, v{a+3}")
        A(f"v_add_f32 v{a}, v{a}, v{a+2}\nv_add_f32 v{a+1}, v{a+1}, v{a+3}")
    def layernorm(x, t):
        A(f"v_readfirstlane_b32 s30, v{x}")
        for i in range(8): A(f"v_subrev_f32 v{t+i}, s30, v{x+i}")
        A(f"v_add_f32 v{t+8}, v{t}, v{t+1}\nv_mul_f32 v{t+9}, v{t}, v{t}\nv_add_f32 v{t+10}, v{t+2}, v{t+3}\nv_mul_f32 v{t+11}, v{t+1}, v{t+1}")
        A(f"v_add_f32 v{t+8}, v{t+8}, v{t+4}\nv_fmac_f32 v{t+9}, v{t+2}, v{t+2}\nv_add_f32 v{t+10}, v{t+10}, v{t+5}\nv_fmac_f32 v{t+11}, v{t+3}, v{t+3}")
        A(f"v_add_f32 v{t+8}, v{t+8}, v{t+6}\nv_fmac_f32 v{t+9}, v{t+4}, v{t+4}\nv_add_f32 v{t+10}, v{t+10}, v{t+7}\nv_fmac_f32 v{t+11}, v{t+5}, v{t+5}")
        A(f"v_fmac_f32 v{t+9}, v{t+6}, v{t+6}\nv_fmac_f32 v{t+11}, v{t+7}, v{t+7}")
        A(f"v_add_f32 v{t+8}, v{t+8}, v{t+10}\nv_add_f32 v{t+9}, v{t+9}, v{t+11}")
        A(f"v_permlane32_swap_b32 v{t+8}, v{t+9}\nv_add_f32 v{t+8}, v{t+8}, v{t+9}")
        for k in (8, 4, 2, 1): A(f"v_add_f32_dpp v{t+8}, v{t+8}, v{t+8} row_ror:{k} row_mask:0xf bank_mask:0xf")
        A(f"v_readlane_b32 s31, v{t+8}, 0\nv_readlane_b32 s89, v{t+8}, 16\nv_readlane_b32 s90, v{t+8}, 32\nv_readlane_b32 s91, v{t+8}, 48")
        A(f"v_mov_b32 v{t}, s31\nv_mov_b32 v{t+1}, s90\nv_add_f32 v{t}, s89, v{t}\nv_add_f32 v{t+1}, s91, v{t+1}")
        A(f"v_mul_f32 v{t}, 0x3b000000, v{t}\nv_mul_f32 v{t+1}, 0x3b000000, v{t+1}")
        A(f"v_fma_f32 v{t+1}, -v{t}, v{t}, v{t+1}\nv_add_f32 v{t}, s30, v{t}")
        A(f"v_max_f32 v{t+1}, 0, v{t+1}")
        rnd(t+1); rnd(t)
        A(f"v_add_f32 v{t+1}, 0x{f2u(1e-5):x}, v{t+1}")
        rnd(t+1)
        A(f"v_sqrt_f32 v{t+1}, v{t+1}")
        for i in range(8): A(f"v_sub_f32 v{x+i}, v{x+i}, v{t}")
        rnd(t+1)
        A(f"v_rcp_f32 v{t+2}, v{t+1}")
        for i in range(8): rnd(x+i)
        for i in range(8): A(f"v_mul_f32 v{t+3+i}, v{x+i}, v{t+2}")
        for i in range(8): A(f"v_fma_f32 v{x+i}, -v{t+3+i}, v{t+1}, v{x+i}")
        for i in range(8): A(f"v_fmac_f32 v{t+3+i}, v{x+i}, v{t+2}")
        for i in range(8): rnd(x+i, t+3+i)
    def unpack8(dst, src):
        for k in range(4): A(f"v_lshlrev_b32 v{dst+2*k}, 16, v{src+k}\nv_and_b32 v{dst+2*k+1}, 0xffff0000, v{src+k}")
    def pack8(dst, src):
        for k in range(4): A(f"v_perm_b32 v{dst+k}, v{src+2*k+1}, v{src+2*k}, s78")
    def select_tag(dst, acc):
        for jj in range(8):
            m = 0x00010001 << jj
            setexec(m, m); tag4(dst, acc + 4*jj)
    def exit_():
        A("s_branch L_exit")

    BA, BB, BC = 64, 128, 192
    A(f"""
    s_cmp_ge_u32 s2, 256
    s_cbranch_scc1 L_end
    s_load_dwordx2 s[16:17], s[0:1], 0
    s_load_dwordx2 s[20:21], s[0:1], 24
    s_load_dwordx2 s[12:13], s[0:1], 96
    s_load_dwordx2 s[4:5], s[0:1], 8
    s_load_dwordx2 s[8:9], s[0:1], 16
    v_lshrrev_b32 v1, 6, v0
    v_and_b32 v0, 63, v0
    v_mov_b32 v10, 0
    v_mov_b32 v11, 0
    v_readfirstlane_b32 s3, v1
    ds_write_b32 v10, v10 offset:{L_FLAG}
    s_lshr_b32 s24, s2, 5
    s_and_b32 s25, s2, 31
    s_mov_b64 s[60:61], -1
    s_mov_b32 s76, 0xff
    s_mov_b32 s77, 0x05040100
    s_mov_b32 s78, 0x07060302
    v_lshlrev_b32 v2, 4, v0
    s_mov_b32 s18, 1024
    s_mov_b32 s19, 0x20000
    s_mov_b32 s22, {512*8192}
    s_mov_b32 s23, 0x20000
    s_mov_b32 s14, 0x20000000
    s_mov_b32 s15, 0x20000
    s_mov_b32 s6, 0x8000000
    s_mov_b32 s7, 0x20000
    s_mov_b32 s10, 0x8000000
    s_mov_b32 s11, 0x20000
    v_lshrrev_b32 v22, 1, v0
    v_lshlrev_b32 v22, 17, v22
    v_and_b32 v23, 1, v0
    v_lshl_add_u32 v22, v23, 4, v22
    s_and_b32 s93, s25, 7
    s_lshl_b32 s93, s93, 2
    s_lshr_b32 s31, s25, 3
    s_add_u32 s93, s93, s31
    s_lshl_b32 s30, s93, 5
    s_lshl_b32 s31, s24, 10
    s_add_u32 s30, s30, s31
    v_and_b32 v1, 3, v0
    v_lshlrev_b32 v1, 4, v1
    v_bfe_u32 v3, v0, 2, 2
    v_lshl_add_u32 v1, v3, 8, v1
    v_lshrrev_b32 v21, 4, v0
    v_lshl_add_u32 v1, v21, 6, v1
    s_lshl_b32 s26, s24, 24
    s_and_b32 s31, s3, 3
    s_lshl_b32 s31, s31, 13
    s_add_u32 s26, s26, s31
    s_lshl_b32 s31, s25, 17
    s_add_u32 s27, s26, s31
    s_add_u32 s28, s27, 4096
    """)
    stamp(0)
    A("""
    s_cmp_lg_u32 s3, 0
    s_waitcnt lgkmcnt(0)
    s_cbranch_scc1 L_n0
    s_setprio 3
    buffer_load_dwordx4 v[24:27], v2, s[16:19], 0 offen
    buffer_load_dword v9, v10, s[12:15], 0 offen sc1
    """)
    for i in range(16):
        A(f"buffer_load_dwordx4 {v4(64+4*i)}, v22, s[20:23], s30 offen")
        if i < 15: A("s_add_u32 s30, s30, 8192")
    A("s_barrier\ns_branch L_h0\nL_n0:\ns_cmp_lt_u32 s3, 4\ns_barrier\ns_cbranch_scc1 L_h123")
    def loads(buf, kind):
        for i in range(8):
            r = buf + (0 if kind == "K" else 32) + 4*i
            A(f"buffer_load_dwordx4 {v4(r)}, v{1 if kind == 'K' else 2}, s[{4 if kind == 'K' else 8}:{7 if kind == 'K' else 11}], s{27 + i // 4} offen offset:{(i % 4) * 1024} nt")
    loads(BC, "K"); loads(BC, "V")
    A(f"""
    s_and_b32 s3, s3, 3
    v_mov_b32 v3, 0xff7fffff
    v_mov_b32 v8, 0xff7fffff
    v_mov_b32 v4, 0
    v_mov_b32 v5, 0
    v_mov_b32 v6, 0
    s_lshl_b32 s30, s3, 2
    v_mov_b32 v22, s30
    v_add_u32 v7, 48, v22
    s_lshl_b32 s26, s24, 24
    s_sub_u32 s30, s27, s26
    s_add_u32 s30, s30, 0x18000
    v_mov_b32 v9, s30
    """)
    for r in range(32, 64): A(f"v_mov_b32 v{r}, 0")
    for buf in (BB, BA):
        A("s_add_u32 s27, s27, 0x8000\ns_add_u32 s28, s28, 0x8000")
        if pace is not None: A(f"s_waitcnt vmcnt({pace})")
        loads(buf, "K")
        if pace is not None: A(f"s_waitcnt vmcnt({pace})")
        loads(buf, "V")
    ldswait(L_FLAG, 1)
    A(f"ds_read_b128 v[12:15], v2 offset:{L_Q}\nds_read_b32 v20, v10 offset:{L_T4}")
    stamp(1)
    A(f"""
    L_stream:
    s_mov_b32 s29, 0
    s_mov_b32 s84, 0x88888888
    s_mov_b32 s85, 0x88888888
    s_mov_b32 s80, 0x{SCALE:x}
    s_mov_b32 s82, 0x{L2E:x}
    s_mov_b32 s63, 2000000
    s_mov_b32 s81, 2
    s_waitcnt lgkmcnt(0)
    v_readfirstlane_b32 s79, v20
    """)
    outl = []
    def step(X, Y, wk, wv):
        K = X; V = X + 32
        if Y is None: A(f"s_waitcnt vmcnt({wk})")
        else:
            Ls = A.label("Lk")
            outl.append(f"""
            {Ls}x:
            s_cmp_eq_u32 s30, -1
            s_cbranch_scc0 {Ls}e
            s_sleep 1
            ds_read_b32 v9, v7 offset:{L_TAB}
            s_sub_u32 s63, s63, 1
            s_cmp_lg_u32 s63, 0
            s_waitcnt lgkmcnt(0)
            s_cbranch_scc1 {Ls}r
            {Ls}e:
            s_mov_b32 s29, 1
            """ + (f"s_waitcnt vmcnt(8)\n" if early else "") + f"s_branch {Ls}")
            A(f"""
            s_waitcnt {'' if early == 1 else f'vmcnt({wk}) '}lgkmcnt(0)
            {Ls}r:
            v_readfirstlane_b32 s30, v9
            s_cmp_lt_i32 s30, 0
            s_cbranch_scc1 {Ls}x
            s_cbranch_execz {Ls}
            s_add_u32 s27, s26, s30
            s_add_u32 s28, s27, 4096
            """)
            if req == 'top': A(f"v_add_u32 v7, 16, v7\nds_write_b32 v22, v7 offset:{L_REQ}")
            loads(Y, "K")
            if early == 3:
                A(f"s_add_u32 s81, s81, 1\ns_cmp_lt_u32 s81, {edyn}\ns_cbranch_scc1 {Ls}")
            if early:
                loads(Y, "V")
                if early == 1: A("s_waitcnt vmcnt(24)")
            A(f"{Ls}:")
        D = [24, 28] + [K + 4*i for i in range(6)]
        S = K + 24
        for i in range(8): A(f"v_mfma_f32_16x16x32_bf16 {v4(D[i])}, {v4(K+4*i)}, v[12:15], 0")
        dm = "row_mask:0xf bank_mask:0xf"
        for i in range(8): A(f"v_add_f32_dpp v{D[i]+1}, v{D[i]}, v{D[i]+1} quad_perm:[0,0,0,0] {dm}")
        for i in range(8): A(f"v_add_f32_dpp v{D[i]+3}, v{D[i]+2}, v{D[i]+3} quad_perm:[2,2,2,2] {dm}")
        for i in range(8): A(f"v_add_f32_dpp v{S+i}, v{D[i]+1}, v{D[i]+3} quad_perm:[1,1,1,1] {dm}")
        for i in range(8): rnd(S+i)
        for i in range(8): A(f"v_mul_f32 v{S+i}, s80, v{S+i}")
        for i in range(8): rnd(S+i)
        Lf = A.label("Lf")
        A(f"""
        v_max3_f32 v20, v{S}, v{S+1}, v{S+2}
        v_max3_f32 v21, v{S+3}, v{S+4}, v{S+5}
        v_max3_f32 v20, v20, v{S+6}, v{S+7}
        v_max_f32 v20, v20, v21
        v_cmp_gt_f32 vcc, v20, v8
        s_and_b64 vcc, vcc, s[84:85]
        s_cbranch_execz {Lf}s
        s_cbranch_scc0 {Lf}
        {Lf}s:
        v_max_f32 v20, v20, v3
        v_mov_b32 v21, v20
        v_permlane32_swap_b32 v20, v21
        v_max_f32 v20, v20, v21
        v_mov_b32 v21, v20
        v_permlane16_swap_b32 v20, v21
        v_max_f32 v3, v20, v21
        v_mul_f32 v21, 0x{NL2E:x}, v3
        v_add_f32 v8, 0x{f2u(tau):x}, v3
        v_sub_f32 v20, v21, v6
        v_min_f32 v20, 0, v20
        v_exp_f32 v20, v20
        v_mov_b32 v6, v21
        v_mul_f32 v4, v4, v20
        v_mul_f32 v5, v5, v20
        """)
        for r in range(32, 64): A(f"v_mul_f32 v{r}, v{r}, v20")
        A(f"{Lf}:")
        for i in range(8): A(f"v_fma_f32 v{S+i}, v{S+i}, s82, v6")
        for i in range(8): A(f"v_exp_f32 v{S+i}, v{S+i}")
        for k in range(4): A(f"v_cvt_pk_bf16_f32 v{16+k}, v{S+2*k}, v{S+2*k+1}")
        for i in range(8): A(f"v_add_f32 v{4 + (i & 1)}, v{4 + (i & 1)}, v{S+i}")
        A(f"s_waitcnt vmcnt({wv})")
        if Y is not None:
            Ls = A.label("Lw")
            outl.append(f"{Ls}e:\ns_waitcnt vmcnt(0)\ns_branch {Ls}f")
            A(f"s_cmp_lg_u32 s29, 0\ns_cbranch_scc1 {Ls}e")
            if early == 3:
                A(f"s_cmp_ge_u32 s81, {edyn}\ns_cbranch_scc1 {Ls}\ns_waitcnt vmcnt(8)")
            if early in (0, 3):
                A(f"s_cbranch_execz {Ls}")
                loads(Y, "V")
                A(f"{Ls}:")
            if req == 'mid': A(f"v_add_u32 v7, 16, v7\nds_write_b32 v22, v7 offset:{L_REQ}")
            A(f"{Ls}f:")
        for mm in range(4):
            for hl in range(2):
                for q in range(4):
                    A(f"v_perm_b32 v{K + (2*mm+hl)*4 + q}, v{V + (2*q+1)*4 + mm}, v{V + (2*q)*4 + mm}, s{77 + hl}")
            if mm > 0:
                for j in (2*mm-2, 2*mm-1): A(f"v_mfma_f32_16x16x32_bf16 {v4(32+4*j)}, {v4(K+4*j)}, v[16:19], {v4(32+4*j)}")
            if mm == 3 and Y is not None: A(f"ds_read_b32 v9, v7 offset:{L_TAB}")
        for j in (6, 7): A(f"v_mfma_f32_16x16x32_bf16 {v4(32+4*j)}, {v4(K+4*j)}, v[16:19], {v4(32+4*j)}")
    step(BC, None, 40, 32)
    step(BB, None, 24, 16)
    if stamps: A("s_mov_b32 m0, 8")
    A("s_cbranch_execz L_sdone\n.p2align 3\nL_loop:")
    if stamps: A("s_memrealtime s[58:59]\ns_waitcnt lgkmcnt(0)\ns_min_u32 m0, m0, 15\ns_nop 0\nv_writelane_b32 v11, s58, m0\ns_add_u32 m0, m0, 1")
    step(BA, BB, 8, 16 if early else 8)
    A("s_cmp_lg_u32 s29, 0\ns_cbranch_scc1 L_sdone")
    step(BB, BA, 8, 16 if early else 8)
    if dry: A("s_cbranch_execz L_dryret")
    A("s_cmp_eq_u32 s29, 0\ns_cbranch_scc1 L_loop\nL_sdone:")
    stamp(2)
    A(f"""
    v_add_f32 v4, v4, v5
    v_mov_b32 v5, v4
    v_bfe_u32 v20, v0, 2, 2
    v_lshrrev_b32 v21, 4, v0
    v_permlane32_swap_b32 v4, v5
    v_add_f32 v4, v4, v5
    v_mov_b32 v5, v4
    v_lshlrev_b32 v22, 9, v20
    v_lshl_add_u32 v22, v21, 4, v22
    v_permlane16_swap_b32 v4, v5
    v_add_f32 v4, v4, v5
    s_lshl_b32 s30, s3, 11
    v_add_u32 v22, s30, v22
    s_lshl_b32 s30, s3, 2
    v_lshl_add_u32 v23, v20, 4, s30
    """)
    setexec(0x88888888, 0x88888888)
    A(f"ds_write_b32 v23, v3 offset:{L_ML}\nds_write_b32 v23, v4 offset:{L_ML+64}")
    for j in range(8): A(f"ds_write_b128 v22, {v4(32+4*j)} offset:{L_OP + 64*j}")
    A(f"""
    s_and_b64 exec, s[60:61], 1
    v_mov_b32 v20, 1
    ds_add_rtn_u32 v20, v10, v20 offset:{L_CNT}
    s_mov_b64 exec, s[60:61]
    v_lshrrev_b32 v21, 5, v0
    v_lshlrev_b32 v23, 4, v21
    """)
    for t in range(2): A(f"ds_read_b128 {v4(96+8*t)}, v23 offset:{L_ML + 32*t}\nds_read_b128 {v4(100+8*t)}, v23 offset:{L_ML + 64 + 32*t}")
    for t in range(2):
        for sw in range(4): A(f"ds_read_b128 {v4(64+16*t+4*sw)}, v2 offset:{L_OP + 2048*sw + 1024*t}")
    tags_from_T4("s79", 16)
    A(f"""
    v_and_b32 v22, 31, v0
    v_lshlrev_b32 v22, 4, v22
    v_lshl_add_u32 v22, v21, 14, v22
    v_and_b32 v23, 1, v0
    v_lshlrev_b32 v23, 10, v23
    v_lshl_add_u32 v23, v21, 9, v23
    s_lshl_b32 s92, s24, 16
    s_lshl_b32 s31, s25, 9
    s_add_u32 s92, s92, s31
    s_add_u32 s92, s92, {WS_P1}
    s_add_u32 s93, s92, 0x8000
    s_lshl_b32 s94, s24, 11
    s_lshl_b32 s31, s25, 4
    s_add_u32 s94, s94, s31
    s_add_u32 s94, s94, {WS_ML}
    s_waitcnt lgkmcnt(12)
    v_readfirstlane_b32 s30, v20
    s_cbranch_execz L_t1
    s_cmp_lg_u32 s30, 3
    s_cbranch_scc1 L_exit4
    L_t1:
    s_waitcnt lgkmcnt(8)
    """)
    for t in range(2): A(f"v_max3_f32 v{24+4*t}, v{96+8*t}, v{97+8*t}, v{98+8*t}")
    for t in range(2): A(f"v_max_f32 v{24+4*t}, v{24+4*t}, v{99+8*t}")
    for t in range(2): A(f"v_mul_f32 v{26+4*t}, s82, v{24+4*t}")
    for t in range(2):
        for k in range(4): A(f"v_mul_f32 v{96+8*t+k}, s82, v{96+8*t+k}")
    for t in range(2):
        for k in range(4): A(f"v_sub_f32 v{96+8*t+k}, v{96+8*t+k}, v{26+4*t}")
    for t in range(2):
        for k in range(4): A(f"v_exp_f32 v{96+8*t+k}, v{96+8*t+k}")
    for t in range(2):
        A(f"s_waitcnt lgkmcnt({4-4*t})")
        for k in range(4): A(f"v_mul_f32 v{64+16*t+k}, v{96+8*t}, v{64+16*t+k}")
        for sw in range(1, 4):
            for k in range(4): A(f"v_fmac_f32 v{64+16*t+k}, v{96+8*t+sw}, v{64+16*t+4*sw+k}")
        tag4(64+16*t, 64+16*t, 16)
        Ls = A.label("Ls")
        A(f"s_cbranch_execz {Ls}\nbuffer_store_dwordx4 {v4(64+16*t)}, v22, s[12:15], s{92+t} offen sc1\n{Ls}:")
    for t in range(2): A(f"v_mul_f32 v{25+4*t}, v{96+8*t}, v{100+8*t}")
    for sw in range(1, 4):
        for t in range(2): A(f"v_fmac_f32 v{25+4*t}, v{96+8*t+sw}, v{100+8*t+sw}")
    setexec(2, 2)
    A("v_mov_b32 v24, v28\nv_mov_b32 v25, v29")
    setexec(3, 3)
    tag4(24, 24, 16)
    A("s_cbranch_execz L_t2\nbuffer_store_dwordx4 v[24:27], v23, s[12:15], s94 offen sc1")
    stamp(3)
    A("L_exit4:\ns_add_u32 s3, s3, 4")
    exit_()
    for o in outl: A(o)
    A("L_t2:")
    live()
    def mm_addr():
        A(f"""
        v_and_b32 v23, 31, v0
        v_lshlrev_b32 v23, 3, v23
        v_lshrrev_b32 v22, 5, v0
        v_lshl_add_u32 v23, v22, 2, v23
        s_lshl_b32 s31, s3, 8
        v_add_u32 v23, s31, v23
        v_lshrrev_b32 v22, 4, v0
        v_lshlrev_b32 v22, 4, v22
        v_and_b32 v16, 1, v0
        v_lshl_add_u32 v16, v16, 6, v22
        v_add_u32 v16, s31, v16
        v_lshrrev_b32 v17, 5, v0
        v_lshlrev_b32 v17, 8, v17
        v_bfe_u32 v18, v0, 4, 1
        v_lshl_add_u32 v17, v18, 4, v17
        s_lshl_b32 s31, s3, 9
        v_add_u32 v17, s31, v17
        v_and_b32 v21, 15, v0
        v_lshlrev_b32 v21, 5, v21
        v_lshrrev_b32 v18, 5, v0
        v_lshl_add_u32 v21, v18, 4, v21
        s_lshl_b32 s30, s24, 2
        s_add_u32 s30, s30, s3
        s_lshl_b32 s96, s30, 9
        s_add_u32 s96, s96, {WS_ML}
        """)
    mm_addr()
    A(f"""
    s_lshl_b32 s92, s30, 14
    s_add_u32 s92, s92, {WS_P1}
    s_bfe_u32 s97, s25, 0x20001
    s_lshl_b32 s97, s97, 12
    s_lshl_b32 s31, s24, 9
    s_add_u32 s97, s97, s31
    s_and_b32 s31, s25, 1
    s_lshl_b32 s31, s31, 5
    s_add_u32 s97, s97, s31
    s_add_u32 s97, s97, {WS_P2}
    v_bfe_u32 v1, v0, 1, 3
    v_lshlrev_b32 v1, 6, v1
    v_and_b32 v18, 1, v0
    v_lshl_add_u32 v1, v18, 4, v1
    v_and_b32 v18, 15, v0
    v_lshlrev_b32 v18, 4, v18
    v_lshrrev_b32 v19, 4, v0
    v_lshl_add_u32 v18, v19, 9, v18
    v_mov_b32 v19, 1
    """)
    sbases(92)
    prepoll(28, 21, 96, 2*nv)
    stamp(2)
    gather(rec_groups(16, 64, 2, 92) + [[(28, 21, 96, 0)]], 20, g2, block1=True)
    stamp(5)
    dm = "row_mask:0xf bank_mask:0xf"
    A("v_and_b32 v26, 0xffff0000, v28\nv_and_b32 v24, 0xffff0000, v28")
    for k in (8, 4, 2, 1): A(f"v_max_f32_dpp v24, v24, v24 row_ror:{k} {dm}")
    A(f"""
    v_mov_b32 v25, v24
    v_mul_f32 v26, 0x{L2E:x}, v26
    v_permlane32_swap_b32 v24, v25
    v_max_f32 v24, v24, v25
    v_mul_f32 v24, 0x{L2E:x}, v24
    v_sub_f32 v26, v26, v24
    v_exp_f32 v26, v26
    v_mul_f32 v24, v26, v29
    """)
    for k in range(4): A(f"v_mul_f32_dpp v{32+k}, v26, v{64+k} row_newbcast:0 {dm}")
    for k in range(4): A(f"v_mul_f32_dpp v{36+k}, v26, v{68+k} row_newbcast:1 {dm}")
    rors = [8, 4, 2, 1]
    for i in range(2, 16):
        for k in range(4): A(f"v_fmac_f32_dpp v{32 + 4*(i&1) + k}, v26, v{64+4*i+k} row_newbcast:{i} {dm}")
        if rors: A(f"v_add_f32_dpp v24, v24, v24 row_ror:{rors.pop(0)} {dm}")
        elif i == 6: A("v_mov_b32 v25, v24")
        elif i == 7: A("v_permlane32_swap_b32 v24, v25")
        elif i == 8: A("v_add_f32 v24, v24, v25")
        elif i == 9: A("v_rcp_f32 v24, v24")
    for k in range(4): A(f"v_add_f32 v{32+k}, v{32+k}, v{36+k}")
    half_scatter(32)
    A(f"""
    v_mul_f32 v32, v32, v24
    v_mul_f32 v33, v33, v24
    v_cvt_pk_bf16_f32 v32, v32, v33
    ds_write_b32 v23, v32 offset:{L_Y}
    ds_read_b128 v[192:195], v16 offset:{L_Y}
    ds_read_b128 v[196:199], v16 offset:{L_Y+128}
    """)
    for s in range(2):
        A(f"s_waitcnt lgkmcnt({1-s})")
        for jj in range(8):
            A(f"v_mfma_f32_16x16x32_bf16 {v4(32+4*jj)}, {v4(128+32*s+4*jj)}, {v4(192+4*s)}, {'0' if s == 0 else v4(32+4*jj)}")
    setexec(0x00010001, 0x00020002)
    for jj in range(8): A(f"ds_write_b128 v17, {v4(32+4*jj)} offset:{L_PRE + 32*jj}")
    A(f"s_and_b64 exec, s[60:61], 1\nds_add_rtn_u32 v19, v10, v19 offset:{L_CNT2}")
    live()
    A(f"""
    ds_read_b128 v[192:195], v18 offset:{L_PRE}
    ds_read_b128 v[196:199], v18 offset:{L_PRE+256}
    s_waitcnt lgkmcnt(2)
    v_readfirstlane_b32 s30, v19
    s_cbranch_execz L_t2b
    s_cmp_lg_u32 s30, 3
    s_cbranch_scc1 L_exit
    L_t2b:
    s_waitcnt lgkmcnt(0)
    """)
    for k in range(4): A(f"v_add_f32 v{192+k}, v{192+k}, v{196+k}")
    for sw in (32, 16):
        for k in range(4): A(f"v_mov_b32 v{196+k}, v{192+k}")
        for k in range(4): A(f"v_permlane{sw}_swap_b32 v{192+k}, v{196+k}")
        for k in range(4): A(f"v_add_f32 v{192+k}, v{192+k}, v{196+k}")
    tag4(192, 192)
    setexec(0xffff, 0)
    A("s_cbranch_execz L_t3")
    A("buffer_store_dwordx4 v[192:195], v1, s[12:15], s97 offen sc1")
    stamp(6)
    exit_()
    A(f"""
    L_h0:
    v_lshrrev_b32 v20, 4, v0
    v_lshlrev_b32 v20, 22, v20
    v_and_b32 v21, 15, v0
    v_lshl_add_u32 v20, v21, 13, v20
    s_lshl_b32 s30, s25, 17
    v_add_u32 v20, s30, v20
    v_cmp_gt_u32 vcc, {4*nstat}, v0
    v_mov_b32 v28, -1
    v_cndmask_b32 v20, v28, v20, vcc
    v_lshlrev_b32 v21, 2, v0
    ds_write_b32 v21, v20 offset:{L_TAB}
    ds_write_b32 v21, v28 offset:{L_TAB+256}
    s_mov_b64 exec, 0xff
    ds_write_b32 v21, v10 offset:{L_REQ}
    s_mov_b64 exec, -1
    s_cmp_lg_u32 s25, 0
    s_cbranch_scc1 L_h0c
    v_mov_b32 v21, {32*nstat << cs}
    v_lshlrev_b32 v20, 8, v0
    s_lshl_b32 s30, s24, 10
    s_add_u32 s30, s30, {WS_TK}
    s_mov_b64 exec, 15
    buffer_store_dword v21, v20, s[12:15], s30 offen sc1
    s_mov_b64 exec, -1
    L_h0c:
    s_waitcnt vmcnt(16)
    """)
    stamp(5)
    unpack8(28, 24)
    A("v_add_u32 v9, 0x01010101, v9")
    layernorm(28, 40)
    pack8(36, 28)
    tags_from_T4('v9')
    for c in range(8): A(f"v_mov_b32 v{40+c}, 0")
    for a in range(8):
        A(f"s_waitcnt vmcnt({14 - 2*a})")
        qp = "[0,0,2,2]" if a < 4 else "[1,1,3,3]"
        for d in range(4):
            for hl in range(2): A(f"v_perm_b32 v{48+2*d+hl}, v{64+8*a+4+d}, v{64+8*a+d}, s{77+hl}")
        for c in range(8): A(f"v_dot2c_f32_bf16_dpp v{40+c}, v{36+(a&3)}, v{48+c} quad_perm:{qp} {dm}")
    for c in range(4): A(f"v_permlane32_swap_b32 v{40+c}, v{44+c}")
    for c in range(4): A(f"v_add_f32 v{40+c}, v{40+c}, v{44+c}")
    for c in range(4): A(f"v_mov_b32 v{44+c}, v{40+c}")
    for c in range(4): A(f"v_permlane16_swap_b32 v{40+c}, v{44+c}")
    for c in range(4): A(f"v_add_f32 v{40+c}, v{40+c}, v{44+c}")
    for k in (8, 4, 2):
        for c in range(4): A(f"v_add_f32_dpp v{40+c}, v{40+c}, v{40+c} row_ror:{k} {dm}")
    for c in range(4): rnd(40+c)
    tag4(40, 40)
    A(f"""
    v_lshlrev_b32 v20, 5, v23
    v_lshrrev_b32 v21, 5, v0
    v_lshl_add_u32 v20, v21, 4, v20
    s_lshl_b32 s92, s24, 11
    s_add_u32 s92, s92, {WS_Q}
    s_lshl_b32 s30, s93, 6
    s_add_u32 s30, s30, s92
    s_and_b32 exec_lo, s60, 3
    s_and_b32 exec_hi, s61, 3
    s_cbranch_execz L_qst
    buffer_store_dwordx4 v[40:43], v20, s[12:15], s30 offen sc1
    L_qst:
    s_mov_b64 exec, s[60:61]
    v_bfe_u32 v20, v0, 2, 2
    v_lshlrev_b32 v20, 9, v20
    v_lshrrev_b32 v21, 4, v0
    v_lshl_add_u32 v20, v21, 7, v20
    v_and_b32 v21, 3, v0
    v_lshl_add_u32 v20, v21, 5, v20
    """)
    stamp(1)
    gather([[(48, 20, 92, 0), (52, 20, 92, 16)]], 21, gq)
    pack8(56, 48)
    A(f"""
    ds_write_b128 v2, v[56:59] offset:{L_Q}
    ds_write_b32 v10, v9 offset:{L_T4}
    v_mov_b32 v21, 1
    s_waitcnt lgkmcnt(0)
    ds_write_b32 v10, v21 offset:{L_FLAG}
    s_setprio 0
    """)
    stamp(2)
    A(f"""
    s_cbranch_execnz L_hk
    L_h123:
    """)
    if dry:
        A("""
        s_cbranch_execz L_dryret
        v_mov_b32 v9, 0
        s_mov_b32 s29, 0
        s_mov_b32 s81, 0
        s_mov_b64 s[84:85], 0
        s_mov_b64 s[60:61], 0
        s_mov_b64 exec, 0
        s_cmp_eq_u32 s3, 3
        s_cbranch_scc1 L_h0c
        s_cmp_eq_u32 s3, 2
        s_cbranch_scc1 L_loop
        s_branch L_stream
        L_dryret:
        s_mov_b64 s[60:61], -1
        s_mov_b64 exec, -1
        """)
        stamp(1)
    ldswait(L_FLAG, 8)
    A(f"""
    ds_read_b32 v9, v10 offset:{L_T4}
    L_hk:
    s_load_dwordx16 s[32:47], s[0:1], 0
    s_load_dwordx8 s[48:55], s[0:1], 64
    s_waitcnt lgkmcnt(0)
    """)
    tags_from_T4('v9')
    RAW = [64, 96, 224, 32]
    A("s_and_b32 s30, s24, 1\ns_lshl_b32 s30, s30, 2\ns_sub_u32 s30, s25, s30\ns_lshl_b32 s88, s24, 2\ns_add_u32 s88, s88, s30\ns_cmp_lt_u32 s30, 4\ns_cselect_b32 s88, s88, 99")
    A(f"""
    v_bfe_u32 v20, v0, 4, 1
    v_lshlrev_b32 v20, 6, v20
    v_bfe_u32 v21, v0, 3, 1
    v_lshl_add_u32 v20, v21, 1, v20
    v_lshrrev_b32 v21, 5, v0
    v_add_u32 v20, v20, v21
    v_and_b32 v21, 7, v0
    v_lshlrev_b32 v21, 4, v21
    s_waitcnt vmcnt(0)
    s_cmp_lt_u32 s25, 24
    s_cbranch_scc1 L_hw
    """)
    srd(16, PWO, 4096*1024)
    A(f"""
    v_lshl_add_u32 v20, v20, 10, v21
    s_lshl_b32 s30, s24, 2
    s_add_u32 s30, s30, s3
    s_lshl_b32 s30, s30, 17
    s_and_b32 s31, s25, 7
    s_lshl_b32 s31, s31, 7
    s_add_u32 s30, s30, s31
    """)
    for s in range(2):
        for i in range(8):
            A(f"s_add_u32 s31, s30, {(8*i + 4*s)*1024}")
            A(f"buffer_load_dwordx4 {v4(RAW[s]+4*i)}, v20, s[16:19], s31 offen {wpol}")
    A("s_branch L_tr")
    A("L_hw:")
    A("s_cmp_ge_u32 s88, 28\ns_cbranch_scc1 L_srv")
    srd(16, PW1, 512*3584); srd(20, PW2, 1792*1024)
    A(f"""
    v_mul_u32_u24 v20, 3584, v20
    v_add_u32 v20, v20, v21
    s_mul_i32 s30, s3, {128*3584}
    s_lshl_b32 s31, s88, 7
    s_add_u32 s30, s30, s31
    """)
    for s in range(2):
        for i in range(8):
            A(f"s_add_u32 s31, s30, {(8*i + 4*s)*3584}")
            A(f"buffer_load_dwordx4 {v4(64+32*s+4*i)}, v20, s[16:19], s31 offen {wpol}")
    A(f"""
    v_lshrrev_b32 v20, 4, v0
    v_lshlrev_b32 v20, 10, v20
    v_and_b32 v21, 15, v0
    v_lshl_add_u32 v20, v21, 4, v20
    s_lshl_b32 s30, s88, 16
    s_lshl_b32 s31, s3, 8
    s_add_u32 s30, s30, s31
    """)
    for s in range(2):
        for i in range(8):
            A(f"s_add_u32 s31, s30, {(8*i + 4*s)*1024}")
            A(f"buffer_load_dwordx4 {v4(RAW[2+s]+4*i)}, v20, s[20:23], s31 offen {wpol}")
    srd(16, PB1, 3584)
    A(f"""
    v_bfe_u32 v20, v0, 2, 1
    v_lshlrev_b32 v20, 5, v20
    v_and_b32 v21, 3, v0
    v_lshl_add_u32 v20, v21, 3, v20
    v_lshrrev_b32 v21, 3, v0
    v_add_lshl_u32 v20, v20, v21, 1
    s_lshl_b32 s31, s88, 7
    buffer_load_ushort v8, v20, s[16:19], s31 offen
    v_and_b32 v20, 3, v0
    v_lshlrev_b32 v20, 5, v20
    v_bfe_u32 v21, v0, 2, 3
    v_add_u32 v20, v20, v21
    v_lshrrev_b32 v21, 5, v0
    v_lshl_add_u32 v20, v21, 4, v20
    s_lshl_b32 s31, s3, 7
    v_add_lshl_u32 v3, v20, s31, 1
    """)
    srd(16, PX, 1024)
    A("buffer_load_ushort v12, v3, s[16:19], 0 offen\nbuffer_load_ushort v13, v3, s[16:19], 0 offen offset:16")
    srd(16, PB2, 1024)
    A(f"""
    v_and_b32 v20, 1, v0
    v_lshlrev_b32 v20, 2, v20
    v_lshrrev_b32 v21, 4, v0
    v_add_u32 v20, v20, v21
    s_and_b32 s30, s88, 1
    s_lshl_b32 s30, s30, 3
    v_add_u32 v20, s30, v20
    s_bfe_u32 s30, s88, 0x30001
    s_add_u32 s92, s30, s31
    v_lshl_add_u32 v3, v20, 3, s92
    v_lshlrev_b32 v3, 1, v3
    s_lshl_b32 s30, s30, 4
    s_add_u32 s30, s30, s31
    v_add_lshl_u32 v15, v20, s30, 1
    buffer_load_ushort v14, v3, s[16:19], 0 offen
    """)
    srd(16, POUT, 1024)
    A("L_tr:\ns_waitcnt vmcnt(0)")
    for s in range(4): transp(128 + 32*s, RAW[s])
    for r in (8, 12, 13, 14): A(f"v_lshlrev_b32 v{r}, 16, v{r}")
    A("L_srv:")
    stamp(3)
    A(f"""
    s_lshl_b32 s95, s3, 2
    s_add_u32 s94, s95, {16*nstat}
    s_lshl_b32 s92, s24, 2
    s_lshr_b32 s31, s3, {cs}
    s_add_u32 s92, s92, s31
    s_lshl_b32 s92, s92, 8
    s_add_u32 s92, s92, {WS_TK}
    s_lshl_b32 s93, s31, {13 + cs}
    s_mov_b32 s63, 2000000
    v_mov_b32 v21, s95
    v_not_b32 v24, v9
    s_mov_b64 exec, 1
    L_sv:
    s_sub_u32 s63, s63, 1
    s_cmp_eq_u32 s63, 0
    s_cbranch_scc1 L_sve
    ds_read_b32 v20, v21 offset:{L_REQ}
    s_waitcnt lgkmcnt(0)
    v_readfirstlane_b32 s30, v20
    {"v_cmp_eq_u32 vcc, v24, v9" if eflag else ""}
    {"s_cbranch_vccnz L_sve" if eflag else ""}
    s_cmp_ge_u32 s30, s94
    s_cbranch_scc1 L_svd
    s_sleep 2
    {"" if eflag else "s_branch L_sv"}
    s_cmp_lt_u32 s30, {16*(nstat-1)}
    s_cbranch_scc1 L_sv
    s_and_b32 s31, s63, {eper - 1}
    s_cbranch_scc1 L_sv
    s_waitcnt vmcnt(2)
    buffer_load_dword v24, v10, s[12:15], s92 offen offset:128 sc1
    s_branch L_sv
    L_svd:
    v_mov_b32 v20, 1
    buffer_atomic_add v20, v10, s[12:15], s92 offen sc0 sc1
    v_mov_b32 v22, s94
    s_waitcnt vmcnt(0)
    v_readfirstlane_b32 s30, v20
    s_cmp_lt_u32 s30, {(512 << cs) - 1}
    {"s_cbranch_scc1 L_svn" if eflag else "s_branch L_svn"}
    buffer_store_dword v9, v10, s[12:15], s92 offen offset:128 sc1
    v_mov_b32 v24, v9
    L_svn:
    s_lshr_b32 s27, s30, {7 + cs}
    s_cmp_ge_u32 s27, 4
    s_cbranch_scc1 L_sve
    s_lshl_b32 s27, s27, 22
    s_bfe_u32 s31, s30, 0x{0x50000 + cs:x}
    s_lshl_b32 s31, s31, 17
    s_add_u32 s27, s27, s31
    s_bfe_u32 s31, s30, 0x{0x20005 + cs:x}
    s_lshl_b32 s31, s31, 15
    s_add_u32 s27, s27, s31
    s_and_b32 s31, s30, {(1 << cs) - 1}
    s_lshl_b32 s31, s31, 13
    s_add_u32 s27, s27, s31
    s_add_u32 s27, s27, s93
    v_mov_b32 v23, s27
    ds_write_b32 v22, v23 offset:{L_TAB}
    s_add_u32 s94, s94, 16
    s_cmp_lt_u32 s94, 496
    s_cbranch_scc1 L_sv
    L_sve:
    v_mov_b32 v22, s94
    v_bfrev_b32 v23, 1
    ds_write_b32 v22, v23 offset:{L_TAB}
    s_mov_b64 exec, -1
    s_waitcnt vmcnt(0)
    """)
    stamp(4)
    A(f"""
    s_cmp_lt_u32 s88, 28
    s_cbranch_scc1 L_t3
    s_cmp_lt_u32 s25, 24
    s_cbranch_scc1 L_exit
    s_branch L_t2
    L_t3:
    """)
    live()
    mm_addr()
    A(f"""
    s_lshl_b32 s92, s3, 12
    s_add_u32 s92, s92, {WS_P2}
    s_lshl_b32 s93, s3, 14
    s_add_u32 s93, s93, {WS_P3}
    s_lshl_b32 s97, s88, 5
    s_add_u32 s97, s97, s93
    s_lshl_b32 s31, s88, 10
    s_add_u32 s93, s93, s31
    v_and_b32 v1, 7, v0
    v_lshlrev_b32 v1, 11, v1
    v_lshrrev_b32 v18, 5, v0
    v_lshl_add_u32 v1, v18, 10, v1
    v_bfe_u32 v18, v0, 4, 1
    v_lshl_add_u32 v1, v18, 4, v1
    v_lshlrev_b32 v18, 2, v0
    s_lshl_b32 s31, s3, 7
    v_lshl_add_u32 v19, v0, 1, s31
    v_add_u32 v22, s31, v22
    """)
    for k in range(4): A(f"v_mov_b32 v{88+k}, 0")
    prepoll(64, 21, 96, 64)
    stamp(4)
    gather(rec_groups(4, 64, 2, 92), 20, g3)
    stamp(5)
    for k in range(4): A(f"v_add_f32 v{32+k}, v{64+k}, v{68+k}")
    for k in range(4): A(f"v_add_f32 v{36+k}, v{72+k}, v{76+k}")
    for k in range(4): A(f"v_add_f32 v{32+k}, v{32+k}, v{36+k}")
    half_scatter(32)
    rnd(32); rnd(33)
    A("v_add_f32 v12, v12, v32\nv_add_f32 v13, v13, v33")
    A("v_cvt_pk_bf16_f32 v20, v12, v13")
    A(f"ds_write_b32 v23, v20 offset:{L_H}")
    A("s_waitcnt lgkmcnt(0)\ns_cbranch_execz L_b3\ns_barrier\nL_b3:")
    A(f"ds_read_b128 v[24:27], v2 offset:{L_H}\nds_read_u16 v12, v15 offset:{L_H}\ns_waitcnt lgkmcnt(1)")
    unpack8(28, 24)
    layernorm(28, 40); layernorm(28, 40)
    pack8(24, 28)
    A(f"ds_write_b128 v2, v[24:27] offset:{L_Y}")
    A(f"ds_read_b128 v[80:83], v16 offset:{L_Y}\nds_read_b128 v[84:87], v16 offset:{L_Y+128}")
    for s in range(2):
        A(f"s_waitcnt lgkmcnt({1-s})")
        for jj in range(8):
            A(f"v_mfma_f32_16x16x32_bf16 {v4(32+4*jj)}, {v4(128+32*s+4*jj)}, {v4(80+4*s)}, {'0' if s == 0 else v4(32+4*jj)}")
    setexec(0x00010001, 0x00020002)
    for jj in range(8): A(f"ds_write_b128 v17, {v4(32+4*jj)} offset:{L_PRE + 32*jj}")
    live()
    A("s_waitcnt lgkmcnt(0)\ns_cbranch_execz L_b4\ns_barrier\nL_b4:")
    for k in range(8): A(f"ds_read_b32 v{24+k}, v18 offset:{L_PRE + 256*k}")
    A("""
    s_waitcnt lgkmcnt(0)
    v_add_f32 v24, v24, v25
    v_add_f32 v26, v26, v27
    v_add_f32 v28, v28, v29
    v_add_f32 v30, v30, v31
    v_add_f32 v24, v24, v26
    v_add_f32 v28, v28, v30
    v_add_f32 v24, v24, v28
    """)
    rnd(24)
    A("v_add_f32 v24, v24, v8")
    rnd(24)
    c1 = -2.0 * 0.7978845608028654 * 1.4426950408889634
    A(f"""
    v_mul_f32 v25, v24, v24
    v_mov_b32 v26, 0x{f2u(c1):x}
    v_fmac_f32 v26, 0x{f2u(c1*0.044715):x}, v25
    v_mul_f32 v25, v24, v26
    v_exp_f32 v25, v25
    v_add_f32 v25, 1.0, v25
    v_rcp_f32 v25, v25
    v_mul_f32 v24, v24, v25
    v_cvt_pk_bf16_f32 v24, v24, v24
    ds_write_b16 v19, v24 offset:{L_G}
    ds_read_b128 v[80:83], v22 offset:{L_G}
    ds_read_b128 v[84:87], v22 offset:{L_G+64}
    """)
    for s in range(2):
        A(f"s_waitcnt lgkmcnt({1-s})")
        for jj in range(8):
            A(f"v_mfma_f32_16x16x32_bf16 {v4(32+4*jj)}, {v4(192+32*s+4*jj)}, {v4(80+4*s)}, {'0' if s == 0 else v4(32+4*jj)}")
    select_tag(24, 32)
    setexec(0x00ff00ff, 0x00ff00ff)
    A("s_cbranch_execz L_t4\nbuffer_store_dwordx4 v[24:27], v1, s[12:15], s97 offen sc1")
    stamp(6)
    A("s_cmp_ge_u32 s88, 16\ns_cbranch_scc1 L_exit\nL_t4:")
    setexec(0xffffffff, 0x00ffffff)
    gather([[(88, 2, 93, 0)]], 20, g4, mask=(0xffffffff, 0x00ffffff))
    A(f"""
    v_mov_b32 v24, v88
    v_mov_b32 v25, v89
    v_mov_b32 v26, v90
    v_mov_b32 v27, v91
    v_lshlrev_b32 v12, 16, v12
    """)
    half_scatter(24)
    A("v_permlane16_swap_b32 v24, v25\nv_add_f32 v24, v24, v25")
    for k in (8, 4, 2): A(f"v_add_f32_dpp v24, v24, v24 row_ror:{k} {dm}")
    rnd(24)
    A("v_add_f32 v24, v24, v14")
    rnd(24)
    A("v_add_f32 v24, v24, v12\nv_cvt_pk_bf16_f32 v24, v24, v24")
    if dry: A("s_cbranch_execz L_dryret")
    A("s_mov_b32 exec_lo, 0x30003\ns_mov_b32 exec_hi, 0x30003\nbuffer_store_short v24, v3, s[16:19], 0 offen sc1")
    A("s_or_b32 s30, s3, s88\ns_cmp_lg_u32 s30, 0\ns_cbranch_scc1 L_exit7\ns_mov_b64 exec, 1\nbuffer_store_dword v9, v10, s[12:15], 0 offen sc1\nL_exit7:")
    stamp(7)
    A("L_exit:")
    if stamps:
        A(f"""
        s_mov_b64 exec, 0xffff
        s_lshl_b32 s30, s2, 3
        s_add_u32 s30, s30, s3
        s_lshl_b32 s30, s30, 6
        s_add_u32 s30, s30, {WS_STAMP}
        v_lshlrev_b32 v20, 2, v0
        buffer_store_dword v11, v20, s[12:15], s30 offen
        """)
    if dbg:
        A("""
        s_load_dwordx2 s[16:17], s[0:1], 88
        s_mov_b32 s18, 256
        s_mov_b32 s19, 0x20000
        s_cmp_ge_u32 s3, 4
        s_movk_i32 s31, 0x55
        s_cselect_b32 exec_lo, s31, 0x5555
        s_cselect_b32 s30, 32, 0
        v_lshlrev_b32 v20, 1, v0
        s_waitcnt lgkmcnt(0)
        buffer_atomic_umax v11, v20, s[16:19], s30 offen sc1
        s_mov_b64 exec, 1
        v_not_b32 v21, v11
        buffer_atomic_umax v21, v20, s[16:19], 0 offen offset:48 sc1
        """)
    A("L_end:\ns_endpgm")
    body = A.finish()
    return (HDR + f"; @launch grid=(256,1,1) block=(512,1,1) lds={LDS_SIZE}\n" + f""".amdgcn_target "amdgcn-amd-amdhsa--gfx950"
.text
.globl {KN}_kernel
.p2align 8
.type {KN}_kernel,@function
{KN}_kernel:
""" + body + f""".section .rodata,"a"
.p2align 6
.amdhsa_kernel {KN}_kernel
  .amdhsa_next_free_vgpr 256
  .amdhsa_next_free_sgpr 102
  .amdhsa_accum_offset 256
  .amdhsa_group_segment_fixed_size 0
  .amdhsa_kernarg_size 104
  .amdhsa_user_sgpr_count 2
  .amdhsa_user_sgpr_kernarg_segment_ptr 1
  .amdhsa_system_sgpr_workgroup_id_x 1
.end_amdhsa_kernel
""")
if __name__ == "__main__":
    import json
    out = sys.argv[1]; kw = json.loads(sys.argv[2]) if len(sys.argv) > 2 else {}
    open(out, "w").write(gen(**kw))
```

```python
import sys, struct
from asmlib import Asm
KN = "sequential_preLN__gqa_block_cached__mixer_channel_mlp__decode"
def f2u(x): return struct.unpack("<I", struct.pack("<f", x))[0]
L2E = f2u(1.4426950408889634); NL2E = f2u(-1.4426950408889634)
SCALE = f2u(0.08838834764831845)
WS_E, WS_TK, WS_Q, WS_P1, WS_ML, WS_P2, WS_P3 = 0x0, 0x1000, 0x10000, 0x20000, 0xA0000, 0xB0000, 0xC0000
WS_STAMP = 0x10000000
L_FLAG, L_T4, L_Q, L_OP, L_ML, L_OLD, L_H, L_Y, L_PRE, L_G = 0x0, 0x10, 0x100, 0x1000, 0x3000, 0x3100, 0x3200, 0x3600, 0x3A00, 0x4200
L_REQ, L_CNT, L_CNT2, L_TAB = 0x20, 0x30, 0x34, 0x600
LDS_SIZE = 0x5000
PX, PK, PV, PWQ, PWO, PW1, PB1, PW2, PB2, POUT, PWS = 32, 34, 36, 38, 40, 44, 46, 48, 50, 52, 56
GLIMIT = 1000000
HDR = open("cdna_kernels/" + KN + ".s.ref").read().split("; Override launch")[0]

def gen(stamps=False, dry=True, tau=8.0, wpol="nt", pace=None, nstat=12, req='top', cs=2, nv=12, early=0, edyn=12, eper=4, gq=(0,0), g2=(0,0), g3=(0,0), g4=(0,0), eflag=0, dbg=0):
    A = Asm()
    def v4(r): return f"v[{r}:{r+3}]"
    def v2(r): return f"v[{r}:{r+1}]"
    def srd(s, ptr, n):
        A(f"s_mov_b32 s{s}, s{ptr}\ns_mov_b32 s{s+1}, s{ptr+1}\ns_mov_b32 s{s+2}, {n}\ns_mov_b32 s{s+3}, 0x20000")
    def setexec(lo, hi):
        A(f"s_and_b32 exec_lo, s60, 0x{lo:x}\ns_and_b32 exec_hi, s61, 0x{hi:x}")
    def live(): A("s_mov_b64 exec, s[60:61]")
    def stamp(k):
        if stamps:
            A(f"s_memrealtime s[58:59]\ns_waitcnt lgkmcnt(0)\nv_writelane_b32 v11, s58, {2*k}\nv_writelane_b32 v11, s59, {2*k+1}")
    def rnd(r, src=None): A(f"v_cvt_pk_bf16_f32 v{r}, 0, v{r if src is None else src}")
    def transp(dst, src):
        for mm in range(4):
            for hl in range(2):
                for q in range(4):
                    A(f"v_perm_b32 v{dst + (2*mm+hl)*4 + q}, v{src + (2*q+1)*4 + mm}, v{src + (2*q)*4 + mm}, s{77 + hl}")
    def tags_from_T4(vt, t=4):
        A(f"v_mov_b32 v{t}, {vt}\nv_lshrrev_b32 v{t+1}, 8, v{t}\nv_lshrrev_b32 v{t+2}, 16, v{t}\nv_lshrrev_b32 v{t+3}, 24, v{t}")
    def tag4(dst, src, t=4):
        for k in range(4): A(f"v_bfi_b32 v{dst+k}, s76, v{t+k}, v{src+k}")
    def ldswait(off, slp):
        Lp, Ld = A.label("Lq"), A.label("Lqd")
        A(f"""
        s_mov_b32 s63, 2000000
        {Lp}:
        ds_read_b32 v20, v10 offset:{off}
        s_waitcnt lgkmcnt(0)
        v_readfirstlane_b32 s30, v20
        s_cmp_lg_u32 s30, 0
        s_cbranch_scc1 {Ld}
        s_sleep {slp}
        s_sub_u32 s63, s63, 1
        s_cmp_lg_u32 s63, 0
        s_cbranch_scc1 {Lp}
        {Ld}:
        """)
    def prepoll(d, vo, so, n):
        Lp, Ld = A.label("Lp"), A.label("Lpd")
        A(f"s_cbranch_execz {Ld}\ns_mov_b32 s63, {GLIMIT}\n{Lp}:")
        A(f"buffer_load_dwordx4 {v4(d)}, v{vo}, s[12:15], s{so} offen sc1\ns_waitcnt vmcnt(0)\nv_xor_b32 v20, v{d}, v4")
        for k in range(1, 4): A(f"v_bitop3_b32 v20, v20, v{d+k}, v{4+k} bitop3:0xf6")
        A(f"""
        v_and_b32 v20, 0xff, v20
        v_cmp_eq_u32 vcc, 0, v20
        s_bcnt1_i32_b64 s30, vcc
        s_cmp_ge_u32 s30, {n}
        s_cbranch_scc1 {Ld}
        s_sub_u32 s63, s63, 1
        s_cmp_lg_u32 s63, 0
        s_cbranch_scc1 {Lp}
        {Ld}:
        """)
    def gather(groups, tmp, ws=(0, 0), block1=False, mask=None):
        Lp, Ld = A.label("Lg"), A.label("Lgd")
        W, slp = ws
        if W and not block1:
            for gr in groups:
                for d, vo, so, imm in gr: A(f"v_not_b32 v{d}, v4")
        for gi in range(len(groups)):
            if mask is None: A(f"s_mov_b64 s[{64+2*gi}:{65+2*gi}], s[60:61]")
            else: A(f"s_and_b32 s{64+2*gi}, s60, 0x{mask[0]:x}\ns_and_b32 s{65+2*gi}, s61, 0x{mask[1]:x}")
        A(f"s_mov_b32 s63, {GLIMIT}\n{Lp}:")
        for gi, gr in enumerate(groups):
            Ls = A.label("Ls")
            A(f"s_mov_b64 exec, s[{64+2*gi}:{65+2*gi}]\ns_cbranch_execz {Ls}")
            for d, vo, so, imm in gr: A(f"buffer_load_dwordx4 {v4(d)}, v{vo}, s[12:15], s{so} offen offset:{imm} sc1")
            A(f"{Ls}:")
        A("s_mov_b64 s[86:87], 0")
        if W and block1:
            Lw = A.label("Lb")
            A(f"s_cmp_lg_u32 s63, {GLIMIT}\ns_cbranch_scc1 {Lw}\ns_waitcnt vmcnt(0)\n{Lw}:")
        A(f"s_waitcnt vmcnt({W})")
        if slp: A(f"s_sleep {slp}")
        for gi, gr in enumerate(groups):
            Ls = A.label("Ls")
            A(f"s_mov_b64 exec, s[{64+2*gi}:{65+2*gi}]\ns_cbranch_execz {Ls}")
            first = True
            for d, vo, so, imm in gr:
                for k in range(4):
                    if first: A(f"v_xor_b32 v{tmp}, v{d+k}, v{4+k}"); first = False
                    else: A(f"v_bitop3_b32 v{tmp}, v{tmp}, v{d+k}, v{4+k} bitop3:0xf6")
            A(f"v_and_b32 v{tmp}, 0xff, v{tmp}\nv_cmp_ne_u32 s[{64+2*gi}:{65+2*gi}], 0, v{tmp}")
            A(f"s_or_b64 s[86:87], s[86:87], s[{64+2*gi}:{65+2*gi}]\n{Ls}:")
        A(f"s_cmp_eq_u64 s[86:87], 0\ns_cbranch_scc1 {Ld}\ns_sub_u32 s63, s63, 1\ns_cmp_lg_u32 s63, 0\ns_cbranch_scc1 {Lp}\n{Ld}:")
        live()
    def rec_groups(n, dst, vo, sbase):
        gs = []
        for i in range(n):
            if i % 4 == 0: gs.append([])
            gs[-1].append((dst + 4*i, vo, sbase + i // 4, (i % 4) * 1024))
        return gs
    def sbases(s, n=4):
        for k in range(1, n): A(f"s_add_u32 s{s+k}, s{s}, {4096*k}")
    def sum_recs(n, src):
        idx = list(range(n))
        while len(idx) > 1:
            nxt = []
            for a in range(0, len(idx) - 1, 2):
                for k in range(4): A(f"v_add_f32 v{src+4*idx[a]+k}, v{src+4*idx[a]+k}, v{src+4*idx[a+1]+k}")
                nxt.append(idx[a])
            if len(idx) % 2: nxt.append(idx[-1])
            idx = nxt
        half_scatter(src)
    def half_scatter(a):
        A(f"v_permlane32_swap_b32 v{a}, v{a+2}\nv_permlane32_swap_b32 v{a+1}, v{a+3}")
        A(f"v_add_f32 v{a}, v{a}, v{a+2}\nv_add_f32 v{a+1}, v{a+1}, v{a+3}")
    def layernorm(x, t):
        A(f"v_readfirstlane_b32 s30, v{x}")
        for i in range(8): A(f"v_subrev_f32 v{t+i}, s30, v{x+i}")
        A(f"v_add_f32 v{t+8}, v{t}, v{t+1}\nv_mul_f32 v{t+9}, v{t}, v{t}\nv_add_f32 v{t+10}, v{t+2}, v{t+3}\nv_mul_f32 v{t+11}, v{t+1}, v{t+1}")
        A(f"v_add_f32 v{t+8}, v{t+8}, v{t+4}\nv_fmac_f32 v{t+9}, v{t+2}, v{t+2}\nv_add_f32 v{t+10}, v{t+10}, v{t+5}\nv_fmac_f32 v{t+11}, v{t+3}, v{t+3}")
        A(f"v_add_f32 v{t+8}, v{t+8}, v{t+6}\nv_fmac_f32 v{t+9}, v{t+4}, v{t+4}\nv_add_f32 v{t+10}, v{t+10}, v{t+7}\nv_fmac_f32 v{t+11}, v{t+5}, v{t+5}")
        A(f"v_fmac_f32 v{t+9}, v{t+6}, v{t+6}\nv_fmac_f32 v{t+11}, v{t+7}, v{t+7}")
        A(f"v_add_f32 v{t+8}, v{t+8}, v{t+10}\nv_add_f32 v{t+9}, v{t+9}, v{t+11}")
        A(f"v_permlane32_swap_b32 v{t+8}, v{t+9}\nv_add_f32 v{t+8}, v{t+8}, v{t+9}")
        for k in (8, 4, 2, 1): A(f"v_add_f32_dpp v{t+8}, v{t+8}, v{t+8} row_ror:{k} row_mask:0xf bank_mask:0xf")
        A(f"v_readlane_b32 s31, v{t+8}, 0\nv_readlane_b32 s89, v{t+8}, 16\nv_readlane_b32 s90, v{t+8}, 32\nv_readlane_b32 s91, v{t+8}, 48")
        A(f"v_mov_b32 v{t}, s31\nv_mov_b32 v{t+1}, s90\nv_add_f32 v{t}, s89, v{t}\nv_add_f32 v{t+1}, s91, v{t+1}")
        A(f"v_mul_f32 v{t}, 0x3b000000, v{t}\nv_mul_f32 v{t+1}, 0x3b000000, v{t+1}")
        A(f"v_fma_f32 v{t+1}, -v{t}, v{t}, v{t+1}\nv_add_f32 v{t}, s30, v{t}")
        A(f"v_max_f32 v{t+1}, 0, v{t+1}")
        rnd(t+1); rnd(t)
        A(f"v_add_f32 v{t+1}, 0x{f2u(1e-5):x}, v{t+1}")
        rnd(t+1)
        A(f"v_sqrt_f32 v{t+1}, v{t+1}")
        for i in range(8): A(f"v_sub_f32 v{x+i}, v{x+i}, v{t}")
        rnd(t+1)
        A(f"v_rcp_f32 v{t+2}, v{t+1}")
        for i in range(8): rnd(x+i)
        for i in range(8): A(f"v_mul_f32 v{t+3+i}, v{x+i}, v{t+2}")
        for i in range(8): A(f"v_fma_f32 v{x+i}, -v{t+3+i}, v{t+1}, v{x+i}")
        for i in range(8): A(f"v_fmac_f32 v{t+3+i}, v{x+i}, v{t+2}")
        for i in range(8): rnd(x+i, t+3+i)
    def unpack8(dst, src):
        for k in range(4): A(f"v_lshlrev_b32 v{dst+2*k}, 16, v{src+k}\nv_and_b32 v{dst+2*k+1}, 0xffff0000, v{src+k}")
    def pack8(dst, src):
        for k in range(4): A(f"v_perm_b32 v{dst+k}, v{src+2*k+1}, v{src+2*k}, s78")
    def select_tag(dst, acc):
        for jj in range(8):
            m = 0x00010001 << jj
            setexec(m, m); tag4(dst, acc + 4*jj)
    def exit_():
        A("s_branch L_exit")

    BA, BB, BC = 64, 128, 192
    A(f"""
    s_cmp_ge_u32 s2, 256
    s_cbranch_scc1 L_end
    s_load_dwordx2 s[16:17], s[0:1], 0
    s_load_dwordx2 s[20:21], s[0:1], 24
    s_load_dwordx2 s[12:13], s[0:1], 96
    s_load_dwordx2 s[4:5], s[0:1], 8
    s_load_dwordx2 s[8:9], s[0:1], 16
    v_lshrrev_b32 v1, 6, v0
    v_and_b32 v0, 63, v0
    v_mov_b32 v10, 0
    v_mov_b32 v11, 0
    v_readfirstlane_b32 s3, v1
    ds_write_b32 v10, v10 offset:{L_FLAG}
    s_lshr_b32 s24, s2, 5
    s_and_b32 s25, s2, 31
    s_mov_b64 s[60:61], -1
    s_mov_b32 s76, 0xff
    s_mov_b32 s77, 0x05040100
    s_mov_b32 s78, 0x07060302
    v_lshlrev_b32 v2, 4, v0
    s_mov_b32 s18, 1024
    s_mov_b32 s19, 0x20000
    s_mov_b32 s22, {512*8192}
    s_mov_b32 s23, 0x20000
    s_mov_b32 s14, 0x20000000
    s_mov_b32 s15, 0x20000
    s_mov_b32 s6, 0x8000000
    s_mov_b32 s7, 0x20000
    s_mov_b32 s10, 0x8000000
    s_mov_b32 s11, 0x20000
    v_lshrrev_b32 v22, 1, v0
    v_lshlrev_b32 v22, 17, v22
    v_and_b32 v23, 1, v0
    v_lshl_add_u32 v22, v23, 4, v22
    s_and_b32 s93, s25, 7
    s_lshl_b32 s93, s93, 2
    s_lshr_b32 s31, s25, 3
    s_add_u32 s93, s93, s31
    s_lshl_b32 s30, s93, 5
    s_lshl_b32 s31, s24, 10
    s_add_u32 s30, s30, s31
    v_and_b32 v1, 3, v0
    v_lshlrev_b32 v1, 4, v1
    v_bfe_u32 v3, v0, 2, 2
    v_lshl_add_u32 v1, v3, 8, v1
    v_lshrrev_b32 v21, 4, v0
    v_lshl_add_u32 v1, v21, 6, v1
    s_lshl_b32 s26, s24, 24
    s_and_b32 s31, s3, 3
    s_lshl_b32 s31, s31, 13
    s_add_u32 s26, s26, s31
    s_lshl_b32 s31, s25, 17
    s_add_u32 s27, s26, s31
    s_add_u32 s28, s27, 4096
    """)
    stamp(0)
    A("""
    s_cmp_lg_u32 s3, 0
    s_waitcnt lgkmcnt(0)
    s_cbranch_scc1 L_n0
    s_setprio 3
    buffer_load_dwordx4 v[24:27], v2, s[16:19], 0 offen
    buffer_load_dword v9, v10, s[12:15], 0 offen sc1
    """)
    for i in range(16):
        A(f"buffer_load_dwordx4 {v4(64+4*i)}, v22, s[20:23], s30 offen")
        if i < 15: A("s_add_u32 s30, s30, 8192")
    A("s_barrier\ns_branch L_h0\nL_n0:\ns_cmp_lt_u32 s3, 4\ns_barrier\ns_cbranch_scc1 L_h123")
    def loads(buf, kind):
        for i in range(8):
            r = buf + (0 if kind == "K" else 32) + 4*i
            A(f"buffer_load_dwordx4 {v4(r)}, v{1 if kind == 'K' else 2}, s[{4 if kind == 'K' else 8}:{7 if kind == 'K' else 11}], s{27 + i // 4} offen offset:{(i % 4) * 1024} nt")
    loads(BC, "K"); loads(BC, "V")
    A(f"""
    s_and_b32 s3, s3, 3
    v_mov_b32 v3, 0xff7fffff
    v_mov_b32 v8, 0xff7fffff
    v_mov_b32 v4, 0
    v_mov_b32 v5, 0
    v_mov_b32 v6, 0
    s_lshl_b32 s30, s3, 2
    v_mov_b32 v22, s30
    v_add_u32 v7, 48, v22
    s_lshl_b32 s26, s24, 24
    s_sub_u32 s30, s27, s26
    s_add_u32 s30, s30, 0x18000
    v_mov_b32 v9, s30
    """)
    for r in range(32, 64): A(f"v_mov_b32 v{r}, 0")
    for buf in (BB, BA):
        A("s_add_u32 s27, s27, 0x8000\ns_add_u32 s28, s28, 0x8000")
        if pace is not None: A(f"s_waitcnt vmcnt({pace})")
        loads(buf, "K")
        if pace is not None: A(f"s_waitcnt vmcnt({pace})")
        loads(buf, "V")
    ldswait(L_FLAG, 1)
    A(f"ds_read_b128 v[12:15], v2 offset:{L_Q}\nds_read_b32 v20, v10 offset:{L_T4}")
    stamp(1)
    A(f"""
    L_stream:
    s_mov_b32 s29, 0
    s_mov_b32 s84, 0x88888888
    s_mov_b32 s85, 0x88888888
    s_mov_b32 s80, 0x{SCALE:x}
    s_mov_b32 s82, 0x{L2E:x}
    s_mov_b32 s63, 2000000
    s_mov_b32 s81, 2
    s_waitcnt lgkmcnt(0)
    v_readfirstlane_b32 s79, v20
    """)
    outl = []
    def step(X, Y, wk, wv):
        K = X; V = X + 32
        if Y is None: A(f"s_waitcnt vmcnt({wk})")
        else:
            Ls = A.label("Lk")
            outl.append(f"""
            {Ls}x:
            s_cmp_eq_u32 s30, -1
            s_cbranch_scc0 {Ls}e
            s_sleep 1
            ds_read_b32 v9, v7 offset:{L_TAB}
            s_sub_u32 s63, s63, 1
            s_cmp_lg_u32 s63, 0
            s_waitcnt lgkmcnt(0)
            s_cbranch_scc1 {Ls}r
            {Ls}e:
            s_mov_b32 s29, 1
            """ + (f"s_waitcnt vmcnt(8)\n" if early else "") + f"s_branch {Ls}")
            A(f"""
            s_waitcnt {'' if early == 1 else f'vmcnt({wk}) '}lgkmcnt(0)
            {Ls}r:
            v_readfirstlane_b32 s30, v9
            s_cmp_lt_i32 s30, 0
            s_cbranch_scc1 {Ls}x
            s_cbranch_execz {Ls}
            s_add_u32 s27, s26, s30
            s_add_u32 s28, s27, 4096
            """)
            if req == 'top': A(f"v_add_u32 v7, 16, v7\nds_write_b32 v22, v7 offset:{L_REQ}")
            loads(Y, "K")
            if early == 3:
                A(f"s_add_u32 s81, s81, 1\ns_cmp_lt_u32 s81, {edyn}\ns_cbranch_scc1 {Ls}")
            if early:
                loads(Y, "V")
                if early == 1: A("s_waitcnt vmcnt(24)")
            A(f"{Ls}:")
        D = [24, 28] + [K + 4*i for i in range(6)]
        S = K + 24
        for i in range(8): A(f"v_mfma_f32_16x16x32_bf16 {v4(D[i])}, {v4(K+4*i)}, v[12:15], 0")
        dm = "row_mask:0xf bank_mask:0xf"
        for i in range(8): A(f"v_add_f32_dpp v{D[i]+1}, v{D[i]}, v{D[i]+1} quad_perm:[0,0,0,0] {dm}")
        for i in range(8): A(f"v_add_f32_dpp v{D[i]+3}, v{D[i]+2}, v{D[i]+3} quad_perm:[2,2,2,2] {dm}")
        for i in range(8): A(f"v_add_f32_dpp v{S+i}, v{D[i]+1}, v{D[i]+3} quad_perm:[1,1,1,1] {dm}")
        for i in range(8): rnd(S+i)
        for i in range(8): A(f"v_mul_f32 v{S+i}, s80, v{S+i}")
        for i in range(8): rnd(S+i)
        Lf = A.label("Lf")
        A(f"""
        v_max3_f32 v20, v{S}, v{S+1}, v{S+2}
        v_max3_f32 v21, v{S+3}, v{S+4}, v{S+5}
        v_max3_f32 v20, v20, v{S+6}, v{S+7}
        v_max_f32 v20, v20, v21
        v_cmp_gt_f32 vcc, v20, v8
        s_and_b64 vcc, vcc, s[84:85]
        s_cbranch_execz {Lf}s
        s_cbranch_scc0 {Lf}
        {Lf}s:
        v_max_f32 v20, v20, v3
        v_mov_b32 v21, v20
        v_permlane32_swap_b32 v20, v21
        v_max_f32 v20, v20, v21
        v_mov_b32 v21, v20
        v_permlane16_swap_b32 v20, v21
        v_max_f32 v3, v20, v21
        v_mul_f32 v21, 0x{NL2E:x}, v3
        v_add_f32 v8, 0x{f2u(tau):x}, v3
        v_sub_f32 v20, v21, v6
        v_min_f32 v20, 0, v20
        v_exp_f32 v20, v20
        v_mov_b32 v6, v21
        v_mul_f32 v4, v4, v20
        v_mul_f32 v5, v5, v20
        """)
        for r in range(32, 64): A(f"v_mul_f32 v{r}, v{r}, v20")
        A(f"{Lf}:")
        for i in range(8): A(f"v_fma_f32 v{S+i}, v{S+i}, s82, v6")
        for i in range(8): A(f"v_exp_f32 v{S+i}, v{S+i}")
        for k in range(4): A(f"v_cvt_pk_bf16_f32 v{16+k}, v{S+2*k}, v{S+2*k+1}")
        for i in range(8): A(f"v_add_f32 v{4 + (i & 1)}, v{4 + (i & 1)}, v{S+i}")
        A(f"s_waitcnt vmcnt({wv})")
        if Y is not None:
            Ls = A.label("Lw")
            outl.append(f"{Ls}e:\ns_waitcnt vmcnt(0)\ns_branch {Ls}f")
            A(f"s_cmp_lg_u32 s29, 0\ns_cbranch_scc1 {Ls}e")
            if early == 3:
                A(f"s_cmp_ge_u32 s81, {edyn}\ns_cbranch_scc1 {Ls}\ns_waitcnt vmcnt(8)")
            if early in (0, 3):
                A(f"s_cbranch_execz {Ls}")
                loads(Y, "V")
                A(f"{Ls}:")
            if req == 'mid': A(f"v_add_u32 v7, 16, v7\nds_write_b32 v22, v7 offset:{L_REQ}")
            A(f"{Ls}f:")
        for mm in range(4):
            for hl in range(2):
                for q in range(4):
                    A(f"v_perm_b32 v{K + (2*mm+hl)*4 + q}, v{V + (2*q+1)*4 + mm}, v{V + (2*q)*4 + mm}, s{77 + hl}")
            if mm > 0:
                for j in (2*mm-2, 2*mm-1): A(f"v_mfma_f32_16x16x32_bf16 {v4(32+4*j)}, {v4(K+4*j)}, v[16:19], {v4(32+4*j)}")
            if mm == 3 and Y is not None: A(f"ds_read_b32 v9, v7 offset:{L_TAB}")
        for j in (6, 7): A(f"v_mfma_f32_16x16x32_bf16 {v4(32+4*j)}, {v4(K+4*j)}, v[16:19], {v4(32+4*j)}")
    step(BC, None, 40, 32)
    step(BB, None, 24, 16)
    if stamps: A("s_mov_b32 m0, 8")
    A("s_cbranch_execz L_sdone\n.p2align 3\nL_loop:")
    if stamps: A("s_memrealtime s[58:59]\ns_waitcnt lgkmcnt(0)\ns_min_u32 m0, m0, 15\ns_nop 0\nv_writelane_b32 v11, s58, m0\ns_add_u32 m0, m0, 1")
    step(BA, BB, 8, 16 if early else 8)
    A("s_cmp_lg_u32 s29, 0\ns_cbranch_scc1 L_sdone")
    step(BB, BA, 8, 16 if early else 8)
    if dry: A("s_cbranch_execz L_dryret")
    A("s_cmp_eq_u32 s29, 0\ns_cbranch_scc1 L_loop\nL_sdone:")
    stamp(2)
    A(f"""
    v_add_f32 v4, v4, v5
    v_mov_b32 v5, v4
    v_bfe_u32 v20, v0, 2, 2
    v_lshrrev_b32 v21, 4, v0
    v_permlane32_swap_b32 v4, v5
    v_add_f32 v4, v4, v5
    v_mov_b32 v5, v4
    v_lshlrev_b32 v22, 9, v20
    v_lshl_add_u32 v22, v21, 4, v22
    v_permlane16_swap_b32 v4, v5
    v_add_f32 v4, v4, v5
    s_lshl_b32 s30, s3, 11
    v_add_u32 v22, s30, v22
    s_lshl_b32 s30, s3, 2
    v_lshl_add_u32 v23, v20, 4, s30
    """)
    setexec(0x88888888, 0x88888888)
    A(f"ds_write_b32 v23, v3 offset:{L_ML}\nds_write_b32 v23, v4 offset:{L_ML+64}")
    for j in range(8): A(f"ds_write_b128 v22, {v4(32+4*j)} offset:{L_OP + 64*j}")
    A(f"""
    s_and_b64 exec, s[60:61], 1
    v_mov_b32 v20, 1
    ds_add_rtn_u32 v20, v10, v20 offset:{L_CNT}
    s_mov_b64 exec, s[60:61]
    v_lshrrev_b32 v21, 5, v0
    v_lshlrev_b32 v23, 4, v21
    """)
    for t in range(2): A(f"ds_read_b128 {v4(96+8*t)}, v23 offset:{L_ML + 32*t}\nds_read_b128 {v4(100+8*t)}, v23 offset:{L_ML + 64 + 32*t}")
    for t in range(2):
        for sw in range(4): A(f"ds_read_b128 {v4(64+16*t+4*sw)}, v2 offset:{L_OP + 2048*sw + 1024*t}")
    tags_from_T4("s79", 16)
    A(f"""
    v_and_b32 v22, 31, v0
    v_lshlrev_b32 v22, 4, v22
    v_lshl_add_u32 v22, v21, 14, v22
    v_and_b32 v23, 1, v0
    v_lshlrev_b32 v23, 10, v23
    v_lshl_add_u32 v23, v21, 9, v23
    s_lshl_b32 s92, s24, 16
    s_lshl_b32 s31, s25, 9
    s_add_u32 s92, s92, s31
    s_add_u32 s92, s92, {WS_P1}
    s_add_u32 s93, s92, 0x8000
    s_lshl_b32 s94, s24, 11
    s_lshl_b32 s31, s25, 4
    s_add_u32 s94, s94, s31
    s_add_u32 s94, s94, {WS_ML}
    s_waitcnt lgkmcnt(12)
    v_readfirstlane_b32 s30, v20
    s_cbranch_execz L_t1
    s_cmp_lg_u32 s30, 3
    s_cbranch_scc1 L_exit4
    L_t1:
    s_waitcnt lgkmcnt(8)
    """)
    for t in range(2): A(f"v_max3_f32 v{24+4*t}, v{96+8*t}, v{97+8*t}, v{98+8*t}")
    for t in range(2): A(f"v_max_f32 v{24+4*t}, v{24+4*t}, v{99+8*t}")
    for t in range(2): A(f"v_mul_f32 v{26+4*t}, s82, v{24+4*t}")
    for t in range(2):
        for k in range(4): A(f"v_mul_f32 v{96+8*t+k}, s82, v{96+8*t+k}")
    for t in range(2):
        for k in range(4): A(f"v_sub_f32 v{96+8*t+k}, v{96+8*t+k}, v{26+4*t}")
    for t in range(2):
        for k in range(4): A(f"v_exp_f32 v{96+8*t+k}, v{96+8*t+k}")
    for t in range(2):
        A(f"s_waitcnt lgkmcnt({4-4*t})")
        for k in range(4): A(f"v_mul_f32 v{64+16*t+k}, v{96+8*t}, v{64+16*t+k}")
        for sw in range(1, 4):
            for k in range(4): A(f"v_fmac_f32 v{64+16*t+k}, v{96+8*t+sw}, v{64+16*t+4*sw+k}")
        tag4(64+16*t, 64+16*t, 16)
        Ls = A.label("Ls")
        A(f"s_cbranch_execz {Ls}\nbuffer_store_dwordx4 {v4(64+16*t)}, v22, s[12:15], s{92+t} offen sc1\n{Ls}:")
    for t in range(2): A(f"v_mul_f32 v{25+4*t}, v{96+8*t}, v{100+8*t}")
    for sw in range(1, 4):
        for t in range(2): A(f"v_fmac_f32 v{25+4*t}, v{96+8*t+sw}, v{100+8*t+sw}")
    setexec(2, 2)
    A("v_mov_b32 v24, v28\nv_mov_b32 v25, v29")
    setexec(3, 3)
    tag4(24, 24, 16)
    A("s_cbranch_execz L_t2\nbuffer_store_dwordx4 v[24:27], v23, s[12:15], s94 offen sc1")
    stamp(3)
    A("L_exit4:\ns_add_u32 s3, s3, 4")
    exit_()
    for o in outl: A(o)
    A("L_t2:")
    live()
    def mm_addr():
        A(f"""
        v_and_b32 v23, 31, v0
        v_lshlrev_b32 v23, 3, v23
        v_lshrrev_b32 v22, 5, v0
        v_lshl_add_u32 v23, v22, 2, v23
        s_lshl_b32 s31, s3, 8
        v_add_u32 v23, s31, v23
        v_lshrrev_b32 v22, 4, v0
        v_lshlrev_b32 v22, 4, v22
        v_and_b32 v16, 1, v0
        v_lshl_add_u32 v16, v16, 6, v22
        v_add_u32 v16, s31, v16
        v_lshrrev_b32 v17, 5, v0
        v_lshlrev_b32 v17, 8, v17
        v_bfe_u32 v18, v0, 4, 1
        v_lshl_add_u32 v17, v18, 4, v17
        s_lshl_b32 s31, s3, 9
        v_add_u32 v17, s31, v17
        v_and_b32 v21, 15, v0
        v_lshlrev_b32 v21, 5, v21
        v_lshrrev_b32 v18, 5, v0
        v_lshl_add_u32 v21, v18, 4, v21
        s_lshl_b32 s30, s24, 2
        s_add_u32 s30, s30, s3
        s_lshl_b32 s96, s30, 9
        s_add_u32 s96, s96, {WS_ML}
        """)
    mm_addr()
    A(f"""
    s_lshl_b32 s92, s30, 14
    s_add_u32 s92, s92, {WS_P1}
    s_bfe_u32 s97, s25, 0x20001
    s_lshl_b32 s97, s97, 12
    s_lshl_b32 s31, s24, 9
    s_add_u32 s97, s97, s31
    s_and_b32 s31, s25, 1
    s_lshl_b32 s31, s31, 5
    s_add_u32 s97, s97, s31
    s_add_u32 s97, s97, {WS_P2}
    v_bfe_u32 v1, v0, 1, 3
    v_lshlrev_b32 v1, 6, v1
    v_and_b32 v18, 1, v0
    v_lshl_add_u32 v1, v18, 4, v1
    v_and_b32 v18, 15, v0
    v_lshlrev_b32 v18, 4, v18
    v_lshrrev_b32 v19, 4, v0
    v_lshl_add_u32 v18, v19, 9, v18
    v_mov_b32 v19, 1
    """)
    sbases(92)
    prepoll(28, 21, 96, 2*nv)
    stamp(2)
    gather(rec_groups(16, 64, 2, 92) + [[(28, 21, 96, 0)]], 20, g2, block1=True)
    stamp(5)
    dm = "row_mask:0xf bank_mask:0xf"
    A("v_and_b32 v26, 0xffff0000, v28\nv_and_b32 v24, 0xffff0000, v28")
    for k in (8, 4, 2, 1): A(f"v_max_f32_dpp v24, v24, v24 row_ror:{k} {dm}")
    A(f"""
    v_mov_b32 v25, v24
    v_mul_f32 v26, 0x{L2E:x}, v26
    v_permlane32_swap_b32 v24, v25
    v_max_f32 v24, v24, v25
    v_mul_f32 v24, 0x{L2E:x}, v24
    v_sub_f32 v26, v26, v24
    v_exp_f32 v26, v26
    v_mul_f32 v24, v26, v29
    """)
    for k in range(4): A(f"v_mul_f32_dpp v{32+k}, v26, v{64+k} row_newbcast:0 {dm}")
    for k in range(4): A(f"v_mul_f32_dpp v{36+k}, v26, v{68+k} row_newbcast:1 {dm}")
    rors = [8, 4, 2, 1]
    for i in range(2, 16):
        for k in range(4): A(f"v_fmac_f32_dpp v{32 + 4*(i&1) + k}, v26, v{64+4*i+k} row_newbcast:{i} {dm}")
        if rors: A(f"v_add_f32_dpp v24, v24, v24 row_ror:{rors.pop(0)} {dm}")
        elif i == 6: A("v_mov_b32 v25, v24")
        elif i == 7: A("v_permlane32_swap_b32 v24, v25")
        elif i == 8: A("v_add_f32 v24, v24, v25")
        elif i == 9: A("v_rcp_f32 v24, v24")
    for k in range(4): A(f"v_add_f32 v{32+k}, v{32+k}, v{36+k}")
    half_scatter(32)
    A(f"""
    v_mul_f32 v32, v32, v24
    v_mul_f32 v33, v33, v24
    v_cvt_pk_bf16_f32 v32, v32, v33
    ds_write_b32 v23, v32 offset:{L_Y}
    ds_read_b128 v[192:195], v16 offset:{L_Y}
    ds_read_b128 v[196:199], v16 offset:{L_Y+128}
    """)
    for s in range(2):
        A(f"s_waitcnt lgkmcnt({1-s})")
        for jj in range(8):
            A(f"v_mfma_f32_16x16x32_bf16 {v4(32+4*jj)}, {v4(128+32*s+4*jj)}, {v4(192+4*s)}, {'0' if s == 0 else v4(32+4*jj)}")
    setexec(0x00010001, 0x00020002)
    for jj in range(8): A(f"ds_write_b128 v17, {v4(32+4*jj)} offset:{L_PRE + 32*jj}")
    A(f"s_and_b64 exec, s[60:61], 1\nds_add_rtn_u32 v19, v10, v19 offset:{L_CNT2}")
    live()
    A(f"""
    ds_read_b128 v[192:195], v18 offset:{L_PRE}
    ds_read_b128 v[196:199], v18 offset:{L_PRE+256}
    s_waitcnt lgkmcnt(2)
    v_readfirstlane_b32 s30, v19
    s_cbranch_execz L_t2b
    s_cmp_lg_u32 s30, 3
    s_cbranch_scc1 L_exit
    L_t2b:
    s_waitcnt lgkmcnt(0)
    """)
    for k in range(4): A(f"v_add_f32 v{192+k}, v{192+k}, v{196+k}")
    for sw in (32, 16):
        for k in range(4): A(f"v_mov_b32 v{196+k}, v{192+k}")
        for k in range(4): A(f"v_permlane{sw}_swap_b32 v{192+k}, v{196+k}")
        for k in range(4): A(f"v_add_f32 v{192+k}, v{192+k}, v{196+k}")
    tag4(192, 192)
    setexec(0xffff, 0)
    A("s_cbranch_execz L_t3")
    A("buffer_store_dwordx4 v[192:195], v1, s[12:15], s97 offen sc1")
    stamp(6)
    exit_()
    A(f"""
    L_h0:
    v_lshrrev_b32 v20, 4, v0
    v_lshlrev_b32 v20, 22, v20
    v_and_b32 v21, 15, v0
    v_lshl_add_u32 v20, v21, 13, v20
    s_lshl_b32 s30, s25, 17
    v_add_u32 v20, s30, v20
    v_cmp_gt_u32 vcc, {4*nstat}, v0
    v_mov_b32 v28, -1
    v_cndmask_b32 v20, v28, v20, vcc
    v_lshlrev_b32 v21, 2, v0
    ds_write_b32 v21, v20 offset:{L_TAB}
    ds_write_b32 v21, v28 offset:{L_TAB+256}
    s_mov_b64 exec, 0xff
    ds_write_b32 v21, v10 offset:{L_REQ}
    s_mov_b64 exec, -1
    s_cmp_lg_u32 s25, 0
    s_cbranch_scc1 L_h0c
    v_mov_b32 v21, {32*nstat << cs}
    v_lshlrev_b32 v20, 8, v0
    s_lshl_b32 s30, s24, 10
    s_add_u32 s30, s30, {WS_TK}
    s_mov_b64 exec, 15
    buffer_store_dword v21, v20, s[12:15], s30 offen sc1
    s_mov_b64 exec, -1
    L_h0c:
    s_waitcnt vmcnt(16)
    """)
    stamp(5)
    unpack8(28, 24)
    A("v_add_u32 v9, 0x01010101, v9")
    layernorm(28, 40)
    pack8(36, 28)
    tags_from_T4('v9')
    for c in range(8): A(f"v_mov_b32 v{40+c}, 0")
    for a in range(8):
        A(f"s_waitcnt vmcnt({14 - 2*a})")
        qp = "[0,0,2,2]" if a < 4 else "[1,1,3,3]"
        for d in range(4):
            for hl in range(2): A(f"v_perm_b32 v{48+2*d+hl}, v{64+8*a+4+d}, v{64+8*a+d}, s{77+hl}")
        for c in range(8): A(f"v_dot2c_f32_bf16_dpp v{40+c}, v{36+(a&3)}, v{48+c} quad_perm:{qp} {dm}")
    for c in range(4): A(f"v_permlane32_swap_b32 v{40+c}, v{44+c}")
    for c in range(4): A(f"v_add_f32 v{40+c}, v{40+c}, v{44+c}")
    for c in range(4): A(f"v_mov_b32 v{44+c}, v{40+c}")
    for c in range(4): A(f"v_permlane16_swap_b32 v{40+c}, v{44+c}")
    for c in range(4): A(f"v_add_f32 v{40+c}, v{40+c}, v{44+c}")
    for k in (8, 4, 2):
        for c in range(4): A(f"v_add_f32_dpp v{40+c}, v{40+c}, v{40+c} row_ror:{k} {dm}")
    for c in range(4): rnd(40+c)
    tag4(40, 40)
    A(f"""
    v_lshlrev_b32 v20, 5, v23
    v_lshrrev_b32 v21, 5, v0
    v_lshl_add_u32 v20, v21, 4, v20
    s_lshl_b32 s92, s24, 11
    s_add_u32 s92, s92, {WS_Q}
    s_lshl_b32 s30, s93, 6
    s_add_u32 s30, s30, s92
    s_and_b32 exec_lo, s60, 3
    s_and_b32 exec_hi, s61, 3
    s_cbranch_execz L_qst
    buffer_store_dwordx4 v[40:43], v20, s[12:15], s30 offen sc1
    L_qst:
    s_mov_b64 exec, s[60:61]
    v_bfe_u32 v20, v0, 2, 2
    v_lshlrev_b32 v20, 9, v20
    v_lshrrev_b32 v21, 4, v0
    v_lshl_add_u32 v20, v21, 7, v20
    v_and_b32 v21, 3, v0
    v_lshl_add_u32 v20, v21, 5, v20
    """)
    stamp(1)
    gather([[(48, 20, 92, 0), (52, 20, 92, 16)]], 21, gq)
    pack8(56, 48)
    A(f"""
    ds_write_b128 v2, v[56:59] offset:{L_Q}
    ds_write_b32 v10, v9 offset:{L_T4}
    v_mov_b32 v21, 1
    s_waitcnt lgkmcnt(0)
    ds_write_b32 v10, v21 offset:{L_FLAG}
    s_setprio 0
    """)
    stamp(2)
    A(f"""
    s_cbranch_execnz L_hk
    L_h123:
    """)
    if dry:
        A("""
        s_cbranch_execz L_dryret
        v_mov_b32 v9, 0
        s_mov_b32 s29, 0
        s_mov_b32 s81, 0
        s_mov_b64 s[84:85], 0
        s_mov_b64 s[60:61], 0
        s_mov_b64 exec, 0
        s_cmp_eq_u32 s3, 3
        s_cbranch_scc1 L_h0c
        s_cmp_eq_u32 s3, 2
        s_cbranch_scc1 L_loop
        s_branch L_stream
        L_dryret:
        s_mov_b64 s[60:61], -1
        s_mov_b64 exec, -1
        """)
        stamp(1)
    ldswait(L_FLAG, 8)
    A(f"""
    ds_read_b32 v9, v10 offset:{L_T4}
    L_hk:
    s_load_dwordx16 s[32:47], s[0:1], 0
    s_load_dwordx8 s[48:55], s[0:1], 64
    s_waitcnt lgkmcnt(0)
    """)
    tags_from_T4('v9')
    RAW = [64, 96, 224, 32]
    A("s_and_b32 s30, s24, 1\ns_lshl_b32 s30, s30, 2\ns_sub_u32 s30, s25, s30\ns_lshl_b32 s88, s24, 2\ns_add_u32 s88, s88, s30\ns_cmp_lt_u32 s30, 4\ns_cselect_b32 s88, s88, 99")
    A(f"""
    v_bfe_u32 v20, v0, 4, 1
    v_lshlrev_b32 v20, 6, v20
    v_bfe_u32 v21, v0, 3, 1
    v_lshl_add_u32 v20, v21, 1, v20
    v_lshrrev_b32 v21, 5, v0
    v_add_u32 v20, v20, v21
    v_and_b32 v21, 7, v0
    v_lshlrev_b32 v21, 4, v21
    s_waitcnt vmcnt(0)
    s_cmp_lt_u32 s25, 24
    s_cbranch_scc1 L_hw
    """)
    srd(16, PWO, 4096*1024)
    A(f"""
    v_lshl_add_u32 v20, v20, 10, v21
    s_lshl_b32 s30, s24, 2
    s_add_u32 s30, s30, s3
    s_lshl_b32 s30, s30, 17
    s_and_b32 s31, s25, 7
    s_lshl_b32 s31, s31, 7
    s_add_u32 s30, s30, s31
    """)
    for s in range(2):
        for i in range(8):
            A(f"s_add_u32 s31, s30, {(8*i + 4*s)*1024}")
            A(f"buffer_load_dwordx4 {v4(RAW[s]+4*i)}, v20, s[16:19], s31 offen {wpol}")
    A("s_branch L_tr")
    A("L_hw:")
    A("s_cmp_ge_u32 s88, 28\ns_cbranch_scc1 L_srv")
    srd(16, PW1, 512*3584); srd(20, PW2, 1792*1024)
    A(f"""
    v_mul_u32_u24 v20, 3584, v20
    v_add_u32 v20, v20, v21
    s_mul_i32 s30, s3, {128*3584}
    s_lshl_b32 s31, s88, 7
    s_add_u32 s30, s30, s31
    """)
    for s in range(2):
        for i in range(8):
            A(f"s_add_u32 s31, s30, {(8*i + 4*s)*3584}")
            A(f"buffer_load_dwordx4 {v4(64+32*s+4*i)}, v20, s[16:19], s31 offen {wpol}")
    A(f"""
    v_lshrrev_b32 v20, 4, v0
    v_lshlrev_b32 v20, 10, v20
    v_and_b32 v21, 15, v0
    v_lshl_add_u32 v20, v21, 4, v20
    s_lshl_b32 s30, s88, 16
    s_lshl_b32 s31, s3, 8
    s_add_u32 s30, s30, s31
    """)
    for s in range(2):
        for i in range(8):
            A(f"s_add_u32 s31, s30, {(8*i + 4*s)*1024}")
            A(f"buffer_load_dwordx4 {v4(RAW[2+s]+4*i)}, v20, s[20:23], s31 offen {wpol}")
    srd(16, PB1, 3584)
    A(f"""
    v_bfe_u32 v20, v0, 2, 1
    v_lshlrev_b32 v20, 5, v20
    v_and_b32 v21, 3, v0
    v_lshl_add_u32 v20, v21, 3, v20
    v_lshrrev_b32 v21, 3, v0
    v_add_lshl_u32 v20, v20, v21, 1
    s_lshl_b32 s31, s88, 7
    buffer_load_ushort v8, v20, s[16:19], s31 offen
    v_and_b32 v20, 3, v0
    v_lshlrev_b32 v20, 5, v20
    v_bfe_u32 v21, v0, 2, 3
    v_add_u32 v20, v20, v21
    v_lshrrev_b32 v21, 5, v0
    v_lshl_add_u32 v20, v21, 4, v20
    s_lshl_b32 s31, s3, 7
    v_add_lshl_u32 v3, v20, s31, 1
    """)
    srd(16, PX, 1024)
    A("buffer_load_ushort v12, v3, s[16:19], 0 offen\nbuffer_load_ushort v13, v3, s[16:19], 0 offen offset:16")
    srd(16, PB2, 1024)
    A(f"""
    v_and_b32 v20, 1, v0
    v_lshlrev_b32 v20, 2, v20
    v_lshrrev_b32 v21, 4, v0
    v_add_u32 v20, v20, v21
    s_and_b32 s30, s88, 1
    s_lshl_b32 s30, s30, 3
    v_add_u32 v20, s30, v20
    s_bfe_u32 s30, s88, 0x30001
    s_add_u32 s92, s30, s31
    v_lshl_add_u32 v3, v20, 3, s92
    v_lshlrev_b32 v3, 1, v3
    s_lshl_b32 s30, s30, 4
    s_add_u32 s30, s30, s31
    v_add_lshl_u32 v15, v20, s30, 1
    buffer_load_ushort v14, v3, s[16:19], 0 offen
    """)
    srd(16, POUT, 1024)
    A("L_tr:\ns_waitcnt vmcnt(0)")
    for s in range(4): transp(128 + 32*s, RAW[s])
    for r in (8, 12, 13, 14): A(f"v_lshlrev_b32 v{r}, 16, v{r}")
    A("L_srv:")
    stamp(3)
    A(f"""
    s_lshl_b32 s95, s3, 2
    s_add_u32 s94, s95, {16*nstat}
    s_lshl_b32 s92, s24, 2
    s_lshr_b32 s31, s3, {cs}
    s_add_u32 s92, s92, s31
    s_lshl_b32 s92, s92, 8
    s_add_u32 s92, s92, {WS_TK}
    s_lshl_b32 s93, s31, {13 + cs}
    s_mov_b32 s63, 2000000
    v_mov_b32 v21, s95
    v_not_b32 v24, v9
    s_mov_b64 exec, 1
    L_sv:
    s_sub_u32 s63, s63, 1
    s_cmp_eq_u32 s63, 0
    s_cbranch_scc1 L_sve
    ds_read_b32 v20, v21 offset:{L_REQ}
    s_waitcnt lgkmcnt(0)
    v_readfirstlane_b32 s30, v20
    {"v_cmp_eq_u32 vcc, v24, v9" if eflag else ""}
    {"s_cbranch_vccnz L_sve" if eflag else ""}
    s_cmp_ge_u32 s30, s94
    s_cbranch_scc1 L_svd
    s_sleep 2
    {"" if eflag else "s_branch L_sv"}
    s_cmp_lt_u32 s30, {16*(nstat-1)}
    s_cbranch_scc1 L_sv
    s_and_b32 s31, s63, {eper - 1}
    s_cbranch_scc1 L_sv
    s_waitcnt vmcnt(2)
    buffer_load_dword v24, v10, s[12:15], s92 offen offset:128 sc1
    s_branch L_sv
    L_svd:
    v_mov_b32 v20, 1
    buffer_atomic_add v20, v10, s[12:15], s92 offen sc0 sc1
    v_mov_b32 v22, s94
    s_waitcnt vmcnt(0)
    v_readfirstlane_b32 s30, v20
    s_cmp_lt_u32 s30, {(512 << cs) - 1}
    {"s_cbranch_scc1 L_svn" if eflag else "s_branch L_svn"}
    buffer_store_dword v9, v10, s[12:15], s92 offen offset:128 sc1
    v_mov_b32 v24, v9
    L_svn:
    s_lshr_b32 s27, s30, {7 + cs}
    s_cmp_ge_u32 s27, 4
    s_cbranch_scc1 L_sve
    s_lshl_b32 s27, s27, 22
    s_bfe_u32 s31, s30, 0x{0x50000 + cs:x}
    s_lshl_b32 s31, s31, 17
    s_add_u32 s27, s27, s31
    s_bfe_u32 s31, s30, 0x{0x20005 + cs:x}
    s_lshl_b32 s31, s31, 15
    s_add_u32 s27, s27, s31
    s_and_b32 s31, s30, {(1 << cs) - 1}
    s_lshl_b32 s31, s31, 13
    s_add_u32 s27, s27, s31
    s_add_u32 s27, s27, s93
    v_mov_b32 v23, s27
    ds_write_b32 v22, v23 offset:{L_TAB}
    s_add_u32 s94, s94, 16
    s_cmp_lt_u32 s94, 496
    s_cbranch_scc1 L_sv
    L_sve:
    v_mov_b32 v22, s94
    v_bfrev_b32 v23, 1
    ds_write_b32 v22, v23 offset:{L_TAB}
    s_mov_b64 exec, -1
    s_waitcnt vmcnt(0)
    """)
    stamp(4)
    A(f"""
    s_cmp_lt_u32 s88, 28
    s_cbranch_scc1 L_t3
    s_cmp_lt_u32 s25, 24
    s_cbranch_scc1 L_exit
    s_branch L_t2
    L_t3:
    """)
    live()
    mm_addr()
    A(f"""
    s_lshl_b32 s92, s3, 12
    s_add_u32 s92, s92, {WS_P2}
    s_lshl_b32 s93, s3, 14
    s_add_u32 s93, s93, {WS_P3}
    s_lshl_b32 s97, s88, 5
    s_add_u32 s97, s97, s93
    s_lshl_b32 s31, s88, 10
    s_add_u32 s93, s93, s31
    v_and_b32 v1, 7, v0
    v_lshlrev_b32 v1, 11, v1
    v_lshrrev_b32 v18, 5, v0
    v_lshl_add_u32 v1, v18, 10, v1
    v_bfe_u32 v18, v0, 4, 1
    v_lshl_add_u32 v1, v18, 4, v1
    v_lshlrev_b32 v18, 2, v0
    s_lshl_b32 s31, s3, 7
    v_lshl_add_u32 v19, v0, 1, s31
    v_add_u32 v22, s31, v22
    """)
    for k in range(4): A(f"v_mov_b32 v{88+k}, 0")
    prepoll(64, 21, 96, 64)
    stamp(4)
    gather(rec_groups(4, 64, 2, 92), 20, g3)
    stamp(5)
    for k in range(4): A(f"v_add_f32 v{32+k}, v{64+k}, v{68+k}")
    for k in range(4): A(f"v_add_f32 v{36+k}, v{72+k}, v{76+k}")
    for k in range(4): A(f"v_add_f32 v{32+k}, v{32+k}, v{36+k}")
    half_scatter(32)
    rnd(32); rnd(33)
    A("v_add_f32 v12, v12, v32\nv_add_f32 v13, v13, v33")
    A("v_cvt_pk_bf16_f32 v20, v12, v13")
    A(f"ds_write_b32 v23, v20 offset:{L_H}")
    A("s_waitcnt lgkmcnt(0)\ns_cbranch_execz L_b3\ns_barrier\nL_b3:")
    A(f"ds_read_b128 v[24:27], v2 offset:{L_H}\nds_read_u16 v12, v15 offset:{L_H}\ns_waitcnt lgkmcnt(1)")
    unpack8(28, 24)
    layernorm(28, 40); layernorm(28, 40)
    pack8(24, 28)
    A(f"ds_write_b128 v2, v[24:27] offset:{L_Y}")
    A(f"ds_read_b128 v[80:83], v16 offset:{L_Y}\nds_read_b128 v[84:87], v16 offset:{L_Y+128}")
    for s in range(2):
        A(f"s_waitcnt lgkmcnt({1-s})")
        for jj in range(8):
            A(f"v_mfma_f32_16x16x32_bf16 {v4(32+4*jj)}, {v4(128+32*s+4*jj)}, {v4(80+4*s)}, {'0' if s == 0 else v4(32+4*jj)}")
    setexec(0x00010001, 0x00020002)
    for jj in range(8): A(f"ds_write_b128 v17, {v4(32+4*jj)} offset:{L_PRE + 32*jj}")
    live()
    A("s_waitcnt lgkmcnt(0)\ns_cbranch_execz L_b4\ns_barrier\nL_b4:")
    for k in range(8): A(f"ds_read_b32 v{24+k}, v18 offset:{L_PRE + 256*k}")
    A("""
    s_waitcnt lgkmcnt(0)
    v_add_f32 v24, v24, v25
    v_add_f32 v26, v26, v27
    v_add_f32 v28, v28, v29
    v_add_f32 v30, v30, v31
    v_add_f32 v24, v24, v26
    v_add_f32 v28, v28, v30
    v_add_f32 v24, v24, v28
    """)
    rnd(24)
    A("v_add_f32 v24, v24, v8")
    rnd(24)
    c1 = -2.0 * 0.7978845608028654 * 1.4426950408889634
    A(f"""
    v_mul_f32 v25, v24, v24
    v_mov_b32 v26, 0x{f2u(c1):x}
    v_fmac_f32 v26, 0x{f2u(c1*0.044715):x}, v25
    v_mul_f32 v25, v24, v26
    v_exp_f32 v25, v25
    v_add_f32 v25, 1.0, v25
    v_rcp_f32 v25, v25
    v_mul_f32 v24, v24, v25
    v_cvt_pk_bf16_f32 v24, v24, v24
    ds_write_b16 v19, v24 offset:{L_G}
    ds_read_b128 v[80:83], v22 offset:{L_G}
    ds_read_b128 v[84:87], v22 offset:{L_G+64}
    """)
    for s in range(2):
        A(f"s_waitcnt lgkmcnt({1-s})")
        for jj in range(8):
            A(f"v_mfma_f32_16x16x32_bf16 {v4(32+4*jj)}, {v4(192+32*s+4*jj)}, {v4(80+4*s)}, {'0' if s == 0 else v4(32+4*jj)}")
    select_tag(24, 32)
    setexec(0x00ff00ff, 0x00ff00ff)
    A("s_cbranch_execz L_t4\nbuffer_store_dwordx4 v[24:27], v1, s[12:15], s97 offen sc1")
    stamp(6)
    A("s_cmp_ge_u32 s88, 16\ns_cbranch_scc1 L_exit\nL_t4:")
    setexec(0xffffffff, 0x00ffffff)
    gather([[(88, 2, 93, 0)]], 20, g4, mask=(0xffffffff, 0x00ffffff))
    A(f"""
    v_mov_b32 v24, v88
    v_mov_b32 v25, v89
    v_mov_b32 v26, v90
    v_mov_b32 v27, v91
    v_lshlrev_b32 v12, 16, v12
    """)
    half_scatter(24)
    A("v_permlane16_swap_b32 v24, v25\nv_add_f32 v24, v24, v25")
    for k in (8, 4, 2): A(f"v_add_f32_dpp v24, v24, v24 row_ror:{k} {dm}")
    rnd(24)
    A("v_add_f32 v24, v24, v14")
    rnd(24)
    A("v_add_f32 v24, v24, v12\nv_cvt_pk_bf16_f32 v24, v24, v24")
    if dry: A("s_cbranch_execz L_dryret")
    A("s_mov_b32 exec_lo, 0x30003\ns_mov_b32 exec_hi, 0x30003\nbuffer_store_short v24, v3, s[16:19], 0 offen sc1")
    A("s_or_b32 s30, s3, s88\ns_cmp_lg_u32 s30, 0\ns_cbranch_scc1 L_exit7\ns_mov_b64 exec, 1\nbuffer_store_dword v9, v10, s[12:15], 0 offen sc1\nL_exit7:")
    stamp(7)
    A("L_exit:")
    if stamps:
        A(f"""
        s_mov_b64 exec, 0xffff
        s_lshl_b32 s30, s2, 3
        s_add_u32 s30, s30, s3
        s_lshl_b32 s30, s30, 6
        s_add_u32 s30, s30, {WS_STAMP}
        v_lshlrev_b32 v20, 2, v0
        buffer_store_dword v11, v20, s[12:15], s30 offen
        """)
    if dbg:
        A("""
        v_readlane_b32 s30, v11, 14
        s_cmp_eq_u32 s30, 0
        s_cbranch_scc1 L_end
        s_cmp_lt_u32 s3, 4
        s_cbranch_scc1 L_dbg
        s_cmp_lg_u32 s25, 5
        s_cbranch_scc1 L_end
        L_dbg:
        s_load_dwordx2 s[16:17], s[0:1], 88
        s_mov_b32 s18, 256
        s_mov_b32 s19, 0x20000
        s_cmp_ge_u32 s3, 4
        s_movk_i32 s31, 0x55
        s_cselect_b32 exec_lo, s31, 0x5555
        s_cselect_b32 s30, 32, 0
        v_lshlrev_b32 v20, 1, v0
        s_waitcnt lgkmcnt(0)
        buffer_atomic_umax v11, v20, s[16:19], s30 offen sc1
        s_mov_b64 exec, 1
        v_not_b32 v21, v11
        buffer_atomic_umax v21, v20, s[16:19], 0 offen offset:48 sc1
        """)
    A("L_end:\ns_endpgm")
    body = A.finish()
    return (HDR + f"; @launch grid=(256,1,1) block=(512,1,1) lds={LDS_SIZE}\n" + f""".amdgcn_target "amdgcn-amd-amdhsa--gfx950"
.text
.globl {KN}_kernel
.p2align 8
.type {KN}_kernel,@function
{KN}_kernel:
""" + body + f""".section .rodata,"a"
.p2align 6
.amdhsa_kernel {KN}_kernel
  .amdhsa_next_free_vgpr 256
  .amdhsa_next_free_sgpr 102
  .amdhsa_accum_offset 256
  .amdhsa_group_segment_fixed_size 0
  .amdhsa_kernarg_size 104
  .amdhsa_user_sgpr_count 2
  .amdhsa_user_sgpr_kernarg_segment_ptr 1
  .amdhsa_system_sgpr_workgroup_id_x 1
.end_amdhsa_kernel
""")
if __name__ == "__main__":
    import json
    out = sys.argv[1]; kw = json.loads(sys.argv[2]) if len(sys.argv) > 2 else {}
    open(out, "w").write(gen(**kw))
```
